```python
import torch

def _softmax(x, axis=-1):
    return torch.softmax(x, dim=axis)
def _gelu(x):
    return torch.nn.functional.gelu(x, approximate="tanh")
def _silu(x):
    return torch.nn.functional.silu(x)
def _sigmoid(x):
    return torch.sigmoid(x)
def _layernorm(x, axis=-1, eps=1e-5):
    m = x.mean(dim=axis, keepdim=True)
    v = x.var(dim=axis, keepdim=True, unbiased=False)
    return (x - m) / torch.sqrt(v + eps)
def _scatter_add(tgt, idx, src, axis=0):
    return tgt.clone().index_add_(axis, idx, src)
def _segment_sum(src, seg, n):
    out = torch.zeros((n,) + src.shape[1:], dtype=src.dtype)
    return out.index_add_(0, seg, src)
def _pad(x, pw):
    flat = tuple(v for pair in reversed(pw) for v in pair)
    return torch.nn.functional.pad(x, flat)

kernel_name = 'interleave_layers__linear_kernel_hedgehog__dense_activation_squared_relu__prompt'

def setup_inputs():

    _w = (lambda a: (lambda t: t.to(torch.bfloat16) if t.is_floating_point() else t)(torch.as_tensor(a)))
    def _A_setup():
        B, S, D, H = 1, 2048, 640, 32
        Dh = D // H
        return {
            "x": _w((lambda *s: torch.randn(*s, dtype=torch.bfloat16) * 0.05)(B, S, D)),
            "wqkv": _w((lambda *s: torch.randn(*s, dtype=torch.bfloat16) * 0.2)(D, 3 * D)),
            "w_phi": _w((lambda *s: torch.randn(*s, dtype=torch.bfloat16) * 0.2)(H, Dh, Dh) * (Dh ** -0.5)),
            "wo": _w((lambda *s: torch.randn(*s, dtype=torch.bfloat16) * 0.05)(D, D)),
        }
    _A_in = _A_setup()

    def _B_setup():
        B, S, D, F = 1, 2048, 640, 1728
        return {
            "x": _w((lambda *s: torch.randn(*s, dtype=torch.bfloat16) * 0.05)(B, S, D)),
            "w1": _w((lambda *s: torch.randn(*s, dtype=torch.bfloat16) * 0.05)(D, F)),
            "b1": _w((lambda *s: torch.randn(*s, dtype=torch.bfloat16) * 0.2)(F)),
            "w2": _w((lambda *s: torch.randn(*s, dtype=torch.bfloat16) * 0.05)(F, D)),
            "b2": _w((lambda *s: torch.randn(*s, dtype=torch.bfloat16) * 0.8)(D)),
        }
    _B_in = _B_setup()

    return {
        "A_x": _A_in["x"],
        "A_wqkv": _A_in["wqkv"],
        "A_w_phi": _A_in["w_phi"],
        "A_wo": _A_in["wo"],
        "B_x": _B_in["x"],
        "B_w1": _B_in["w1"],
        "B_b1": _B_in["b1"],
        "B_w2": _B_in["w2"],
        "B_b2": _B_in["b2"],
    }

def reference(A_x, A_wqkv, A_w_phi, A_wo, B_x, B_w1, B_b1, B_w2, B_b2):
    def _A_ref(x, wqkv, w_phi, wo):
        B, S, D = x.shape
        H = 32; Dh = D // H
        qkv = (lambda x, *d: x.permute(*d))((x @ wqkv).reshape(B, S, 3, H, Dh), 2, 0, 3, 1, 4)
        q, k, v = qkv[0], qkv[1], qkv[2]
        pq = torch.einsum("bhsd,hdf->bhsf", q, w_phi)
        pk = torch.einsum("bhsd,hdf->bhsf", k, w_phi)
        phi_q = torch.concatenate([_softmax(pq, axis=-1), _softmax(-pq, axis=-1)], axis=-1)
        phi_k = torch.concatenate([_softmax(pk, axis=-1), _softmax(-pk, axis=-1)], axis=-1)
        kv = torch.einsum("bhsf,bhsd->bhfd", phi_k, v)
        z  = torch.einsum("bhsf->bhf", phi_k)
        num = torch.einsum("bhqf,bhfd->bhqd", phi_q, kv)
        den = torch.einsum("bhqf,bhf->bhq", phi_q, z)[..., None] + 1e-6
        o = num / den
        return (lambda x, *d: x.permute(*d))(o, 0, 2, 1, 3).reshape(B, S, D) @ wo

    def _B_ref(x, w1, b1, w2, b2):
        h = torch.einsum("bsd,df->bsf", x, w1) + b1
        zero = torch.zeros_like(h)
        r = torch.where(h > zero, h, zero)
        h = r * r
        out = torch.einsum("bsf,fd->bsd", h, w2) + b2
        return out

    x = A_x
    x = x + _A_ref(_layernorm(x, axis=-1), A_wqkv, A_w_phi, A_wo)
    x = x + _B_ref(_layernorm(x, axis=-1), B_w1, B_b1, B_w2, B_b2)
    x = x + _A_ref(_layernorm(x, axis=-1), A_wqkv, A_w_phi, A_wo)
    x = x + _B_ref(_layernorm(x, axis=-1), B_w1, B_b1, B_w2, B_b2)
    return x
```

```python
import re

REG_RE = re.compile(r'(?<![\w.])([vas])(?:\[(\d+):(\d+)\]|(\d+))(?![\w])')
TRANS = ('v_exp_f32', 'v_log_f32', 'v_rcp_f32', 'v_rsq_f32', 'v_sqrt_f32', 'v_sin_f32', 'v_cos_f32')


def regs_of(tok):
    tok = tok.strip()
    out = []
    for m in REG_RE.finditer(tok):
        k = m.group(1)
        if m.group(2) is not None:
            out += [(k, i) for i in range(int(m.group(2)), int(m.group(3)) + 1)]
        else:
            out.append((k, int(m.group(4))))
    for name in ('vcc', 'exec', 'm0'):
        if re.search(r'(?<![\w])' + name + r'(?:_lo|_hi)?(?![\w])', tok):
            out.append((name, 0))
    return out


def split_ops(s):
    ops, depth, cur = [], 0, ''
    for ch in s:
        if ch in '[(':
            depth += 1
        elif ch in '])':
            depth -= 1
        if ch == ',' and depth == 0:
            ops.append(cur.strip())
            cur = ''
        else:
            cur += ch
    if cur.strip():
        ops.append(cur.strip())
    return ops


class Ins:
    __slots__ = ('text', 'op', 'defs', 'uses', 'kind', 'tag', 'ab', 'c', 'passes', 'data', 'extra')

    def __init__(self, text, tag=None):
        self.text = text.strip()
        self.tag = tag
        self.extra = None
        parts = self.text.split(None, 1)
        self.op = op = parts[0]
        ops = split_ops(parts[1]) if len(parts) > 1 else []
        if ops:
            last = ops[-1]
            cut = re.search(r'\s+(op_sel|op_sel_hi|neg_lo|neg_hi|offset|offset0|offset1|offen|lds|sc0|sc1|nt|glc|clamp|row_|quad_perm|bound_ctrl|bank_mask|cbsz|abid|blgp|src0_sel|src1_sel|dst_sel|dst_unused)', last)
            if cut:
                ops[-1] = last[:cut.start()]
        R = [regs_of(o) for o in ops]
        flat = lambda L: set(r for x in L for r in x)
        self.ab = set()
        self.c = set()
        self.passes = 0
        self.data = set()
        is_lds = bool(re.search(r'\slds(\s|$)', self.text))
        if op.startswith('v_mfma'):
            self.kind = 'mfma'
            self.defs = flat(R[:1])
            self.ab = flat(R[1:3])
            self.c = flat(R[3:4])
            self.uses = self.ab | self.c
            self.passes = 8 if '32x32' in op else 4
        elif op.startswith('buffer_load') and is_lds:
            self.kind = 'dma'
            self.defs = set()
            self.uses = flat(R) | {('m0', 0)}
        elif op.startswith('buffer_load') or op.startswith('global_load'):
            self.kind = 'vload'
            self.defs = flat(R[:1])
            self.uses = flat(R[1:])
            if 'd16' in op:
                self.uses |= self.defs
        elif op.startswith('buffer_store'):
            self.kind = 'vstore'
            self.defs = set()
            self.uses = flat(R)
            self.data = flat(R[:1])
        elif op.startswith('buffer_atomic'):
            self.kind = 'vstore'
            self.defs = set()
            self.uses = flat(R)
            self.data = flat(R[:1])
            assert ' sc0' not in self.text
        elif op in ('buffer_wbl2', 'buffer_inv'):
            self.kind = 'vstore'
            self.defs = set()
            self.uses = set()
        elif op.startswith('ds_read') or op.startswith('ds_bpermute') or op.startswith('ds_permute') or op.startswith('ds_swizzle'):
            self.kind = 'dsread'
            self.defs = flat(R[:1])
            self.uses = flat(R[1:])
        elif op.startswith('ds_'):
            self.kind = 'dswrite'
            self.defs = set()
            self.uses = flat(R)
        elif op.startswith('s_load') or op.startswith('s_memtime') or op.startswith('s_memrealtime') or op.startswith('s_atomic'):
            self.kind = 'smem'
            self.defs = flat(R[:1])
            self.uses = flat(R[1:])
            if op.startswith('s_atomic'):
                self.uses |= self.defs
        elif op.startswith('v_'):
            self.kind = 'valu'
            assert not (op.startswith('v_pk_') and re.search(r'op_sel:\[[01],1', self.text)), self.text
            if op.startswith('v_permlane') or op.startswith('v_swap'):
                self.defs = flat(R[:2])
                self.uses = flat(R[:2])
            elif op.startswith('v_fmac') or op.startswith('v_dot2c') or op.startswith('v_pk_fmac'):
                self.defs = flat(R[:1])
                self.uses = flat(R)
            elif op == 'v_nop':
                self.defs = set()
                self.uses = set()
            else:
                self.defs = flat(R[:1])
                self.uses = flat(R[1:])
                assert '_co_' not in op and not op.startswith('v_cmpx'), op
        elif op in ('s_waitcnt', 's_nop', 's_barrier', 's_endpgm', 's_setprio', 's_sleep', 's_branch') or op.startswith('s_cbranch'):
            self.kind = 'ctl'
            self.defs = set()
            self.uses = set()
            if 'vcc' in op:
                self.uses = {('vcc', 0)}
        elif op.startswith('s_cmp') or op.startswith('s_bitcmp'):
            self.kind = 'salu'
            self.defs = set()
            self.uses = flat(R)
        elif op.startswith('s_'):
            self.kind = 'salu'
            self.defs = flat(R[:1])
            self.uses = flat(R[1:])
            if op in ('s_addk_i32', 's_mulk_i32', 's_cmov_b32'):
                self.uses |= self.defs
            if 'saveexec' in op:
                self.defs |= {('exec', 0)}
        else:
            raise ValueError('unknown op: ' + text)

    def states(self):
        if self.op == 's_nop':
            return int(self.text.split()[1], 0) + 1
        return 1


class Pseudo:
    def __init__(self, kind, arg=None):
        self.kind = kind
        self.arg = arg


def ins(x, tag=None):
    if isinstance(x, (Ins, Pseudo)):
        return x
    return Ins(x, tag)


def is_vreg(r):
    return r[0] in 'va' and len(r[0]) == 1


def need_states(p, c):
    n = 0
    pv = p.kind == 'valu'
    if pv:
        pdv = set(r for r in p.defs if is_vreg(r))
        pds = set(r for r in p.defs if not is_vreg(r))
        if pdv:
            if c.kind == 'mfma' and pdv & c.uses:
                n = max(n, 3 if p.op.startswith('v_dot') else 2)
            if c.kind == 'valu':
                if c.op.startswith('v_permlane') and pdv & c.uses:
                    n = max(n, 2)
                if ('row_' in c.text or 'quad_perm' in c.text) and pdv & c.uses:
                    n = max(n, 2)
                if (c.op.startswith('v_readfirstlane') or c.op.startswith('v_readlane')) and pdv & c.uses:
                    n = max(n, 1)
                if p.op in TRANS and pdv & c.uses:
                    n = max(n, 1)
                if ('op_sel' in p.text and not p.op.startswith('v_pk_')) or 'dst_sel' in p.text:
                    if pdv & (c.uses | c.defs):
                        n = max(n, 1)
            if p.op.startswith('v_dot'):
                if c.op == p.op:
                    ops = split_ops(c.text.split(None, 1)[1])
                    ab = set(regs_of(ops[1])) | set(regs_of(ops[2]))
                    if pdv & ab:
                        n = max(n, 3)
                elif pdv & (c.uses | c.defs):
                    n = max(n, 3)
        if pds:
            if c.kind in ('vload', 'vstore', 'dma') and pds & c.uses:
                n = max(n, 5)
            if c.kind == 'valu' and pds & c.uses:
                n = max(n, 4 if c.op.startswith('v_readlane') or c.op.startswith('v_writelane') else 2)
            if c.kind in ('salu', 'smem') and pds & c.uses:
                n = max(n, 1)
    elif p.kind == 'mfma':
        big = 12 if p.passes == 8 else 8
        if c.kind == 'mfma':
            if p.defs & c.ab:
                n = max(n, big)
            if p.defs & c.c and not (p.defs == c.c and p.passes == c.passes):
                n = max(n, big - 2)
            if p.defs & c.defs and not (p.defs & c.c):
                n = max(n, big - 2)
        elif c.kind in ('valu', 'vload', 'vstore', 'dma', 'dsread', 'dswrite'):
            if p.defs & (c.uses | c.defs):
                n = max(n, big)
            if p.c & c.defs:
                n = max(n, 7 if p.passes == 8 else 3)
    elif p.kind == 'vstore':
        if len(p.data) >= 3 and p.data & c.defs:
            n = max(n, 2)
    elif p.kind == 'salu':
        if ('m0', 0) in p.defs and c.kind == 'dma':
            n = max(n, 1)
    return n


class Prog:
    def __init__(self):
        self.items = []
        self.nlabel = 0

    def e(self, x, tag=None):
        if isinstance(x, (list, tuple)):
            for y in x:
                self.e(y, tag)
            return
        if isinstance(x, str) and '\n' in x:
            for y in x.split('\n'):
                if y.strip():
                    self.e(y, tag)
            return
        self.items.append(ins(x, tag))

    def newlabel(self, base='L'):
        self.nlabel += 1
        return f'{base}_{self.nlabel}'

    def label(self, name):
        self.items.append(Pseudo('label', name))

    def comment(self, t):
        self.items.append(Pseudo('comment', t))

    def finalize(self):
        out = []
        hist = []
        vq = []
        lq = []
        skips = {}
        stats = {'nop': 0, 'wait': 0, 'n': 0}

        def push(i):
            out.append('  ' + i.text)
            hist.append(i)
            stats['n'] += 1
            if len(hist) > 24:
                del hist[0]

        def do_wait(nv, nl):
            nonlocal vq, lq
            parts = []
            if nv is not None:
                nv = min(nv, 63)
                parts.append(f'vmcnt({nv})')
                vq = vq[len(vq) - nv:] if nv else []
            if nl is not None:
                if any(x.kind == 'smem' for x in lq):
                    nl = 0
                nl = min(nl, 15)
                parts.append(f'lgkmcnt({nl})')
                lq = lq[len(lq) - nl:] if nl else []
            if parts:
                push(Ins('s_waitcnt ' + ' '.join(parts)))
                stats['wait'] += 1

        def last_match(q, pred):
            for k in range(len(q) - 1, -1, -1):
                if pred(q[k]):
                    return len(q) - 1 - k
            return None

        for it in self.items:
            if isinstance(it, Pseudo):
                if it.kind == 'label':
                    out.append(it.arg + ':')
                elif it.kind == 'comment':
                    out.append('; ' + it.arg)
                elif it.kind == 'wait':
                    tv, tl = it.arg
                    nv = nl = None
                    if tv is not None:
                        nv = last_match(vq, (lambda x: True) if tv == '*' else (lambda x: x.tag in tv))
                    if tl is not None:
                        nl = last_match(lq, (lambda x: True) if tl == '*' else (lambda x: x.tag in tl))
                    do_wait(nv, nl)
                elif it.kind == 'skip_begin':
                    skips[it.arg] = (list(vq), list(lq), list(hist))
                elif it.kind == 'skip_end':
                    v0, l0, h0 = skips.pop(it.arg)
                    assert v0[len(v0) - len(vq):] == vq or not vq, 'vm queue not a suffix at ' + it.arg
                    assert l0[len(l0) - len(lq):] == lq or not lq, 'lgkm queue not a suffix at ' + it.arg
                    vq, lq = v0, l0
                    out.append(it.arg + ':')
                    d = 0
                    for p in reversed(h0):
                        assert not (p.kind == 'mfma' and d < 12), 'mfma too close to skip ' + it.arg
                        d += p.states()
                    push(Ins('s_nop 1'))
                elif it.kind == 'drained':
                    vq, lq = [], []
                elif it.kind == 'assert_empty':
                    assert not vq and not lq, 'queues not empty at ' + str(it.arg)
                else:
                    raise ValueError(it.kind)
                continue
            i = it
            if i.op == 's_waitcnt':
                m = re.search(r'vmcnt\((\d+)\)', i.text)
                if m:
                    n = int(m.group(1))
                    vq = vq[max(0, len(vq) - n):] if n else []
                m = re.search(r'lgkmcnt\((\d+)\)', i.text)
                if m:
                    n = int(m.group(1))
                    assert n == 0 or not any(x.kind == 'smem' for x in lq)
                    lq = lq[max(0, len(lq) - n):] if n else []
                push(i)
                continue
            touch = i.uses | i.defs
            if i.kind == 'vload' and 'd16' in i.op:
                nv = last_match(vq, lambda x: x.defs & (touch - i.defs) or (x.defs & touch and 'd16' not in x.op))
            else:
                nv = last_match(vq, lambda x: x.defs & touch)
            nl = last_match(lq, lambda x: x.defs & touch)
            do_wait(nv, nl)
            need, d = 0, 0
            for p in reversed(hist):
                need = max(need, need_states(p, i) - d)
                d += p.states()
                if d >= 20:
                    break
            if need > 0:
                push(Ins(f's_nop {need - 1}'))
                stats['nop'] += need
            push(i)
            if i.kind in ('vload', 'vstore', 'dma'):
                vq.append(i)
            elif i.kind in ('dsread', 'dswrite', 'smem'):
                lq.append(i)
        self.stats = stats
        return '\n'.join(out) + '\n'


def wait(vm=None, lgkm=None):
    f = lambda t: None if t is None else ('*' if t == '*' else (set(t) if isinstance(t, (list, tuple, set)) else {t}))
    return Pseudo('wait', (f(vm), f(lgkm)))


def weave(main, fill, start=0, end=None, per=None):
    main = [list(x) if isinstance(x, (list, tuple)) else [x] for x in main]
    if end is None:
        end = len(main)
    n = end - start
    k = 0
    for m in range(n):
        if per is not None:
            lim = min(len(fill), int((m + 1) * per + 1e-9))
        else:
            lim = ((m + 1) * len(fill) + n - 1) // n
        while k < lim:
            f = fill[k]
            main[start + m] += list(f) if isinstance(f, (list, tuple)) else [f]
            k += 1
    while k < len(fill):
        f = fill[k]
        main[end - 1] += list(f) if isinstance(f, (list, tuple)) else [f]
        k += 1
    return main


def vr(k, base, n=1):
    return f'{k}{base}' if n == 1 else f'{k}[{base}:{base + n - 1}]'


class R:
    def __init__(self, k, base, n):
        self.k, self.base, self.n = k, base, n

    def __getitem__(self, i):
        if isinstance(i, slice):
            a = i.start or 0
            b = self.n if i.stop is None else i.stop
            assert 0 <= a < b <= self.n, (a, b, self.n)
            return R(self.k, self.base + a, b - a)
        assert 0 <= i < self.n, (i, self.n)
        return R(self.k, self.base + i, 1)

    def q(self, i, n=4):
        return self[i * n:(i + 1) * n]

    def __str__(self):
        return vr(self.k, self.base, self.n)

    __repr__ = __str__

    def __format__(self, spec):
        return str(self)


def kernel_footer(name, vgpr=512, agpr_offset=256, sgpr=102):
    return f'''.section .rodata,"a"
.p2align 6
.amdhsa_kernel {name}
  .amdhsa_next_free_vgpr {vgpr}
  .amdhsa_next_free_sgpr {sgpr}
  .amdhsa_accum_offset {agpr_offset}
  .amdhsa_group_segment_fixed_size 0
  .amdhsa_kernarg_size 96
  .amdhsa_user_sgpr_count 2
  .amdhsa_user_sgpr_kernarg_segment_ptr 1
  .amdhsa_system_sgpr_workgroup_id_x 1
  .amdhsa_float_denorm_mode_32 3
.end_amdhsa_kernel
'''


def kernel_header(name):
    return f'''.text
.globl {name}
.p2align 8
.type {name},@function
{name}:
'''
```

```python
XA = 0x000000
OB = 0x280000
HB = 0x500000
ST = 0xBC0000
KV = 0xC00000
FL = 0xD00000
CS1 = 0xD10000
CSQ = 0xD20000
TS = 0xD60000
WQ = 0xE00000
WO = 0x1080000
W1P = 0x1180000
W2P = 0x1400000
WS_BYTES = 0x2000000
OOB = 0x2000000

XT = 20480
HT = 55296

F1 = 0
F3 = 512
F4 = 2560
F5 = 3584
FX = 5632

L_CQ = 0
L_C1 = 256
L_B1 = 704
L_B2 = 1152
L_R0 = 2048
L_R1 = L_R0 + 81920
L_END = 163840
L_SCR = L_END - 40960


def p3_blocks(fs):
    Q, i = fs >> 2, fs & 3
    b0 = (0, 14, 28, 41)[Q]
    if i == 0:
        return b0, b0 + 3, 0
    if i == 1:
        return b0 + 4, b0 + 3, 1
    if Q < 2:
        return (b0 + 7, b0 + 10, 0) if i == 2 else (b0 + 11, b0 + 10, 1)
    return (b0 + 7, None, 0) if i == 2 else (b0 + 10, None, 0)
```

```python
from asmlib import *
from layout import *
from prepass import srd, stat_reduce, ONES

V = lambda b, n=1: R('v', b, n)
A = lambda b, n=1: R('a', b, n)
S = lambda b, n=1: R('s', b, n)
WSR = 's[8:11]'
M16 = 'v_mfma_f32_16x16x32_bf16'
M32 = 'v_mfma_f32_32x32x16_bf16'
PS = 4224
IMG = L_SCR + 8 * PS
LOG2E = '0x3fb8aa3b'
SPIN_LIMIT = 1 << 19

sG, sJ, sW, sTB, sCS, sTH, sFS = (S(i) for i in range(20, 27))
sW1K, sW4K, sSpin, sT0, sT1, sT2, sT3 = (S(i) for i in range(27, 34))
sWQ, sW1, sW1O, sW2, sDum, sXo, sSTo, sHo, sHoO, sKVp = (S(i) for i in range(34, 44))
sF1p, sF1c, sF3p, sF3c, sF4p, sF4c, sF5p, sF5c = (S(i) for i in range(44, 52))
sOl = S(52, 4)
sHl = S(56, 4)
sX3, sST3, sWO, sOut = (S(i) for i in range(60, 64))
KBASE = 64
sLA, sLB, sXcc, sD0, sD1 = (S(i) for i in range(82, 87))
sTSa = S(88, 2)
sTSb = S(90, 2)


def K(off):
    i, o = divmod(off, 4096)
    assert i <= 17
    return ('0' if i == 0 else f's{KBASE + i}'), o


vL16, vT16, vW4, vXP1, vSP1, vOA, vOL, vX4, vSTs, vHH16, vQ16 = (V(i) for i in range(1, 12))
vPW, vVW, vBW, vTA, vTB0, vTB1, vKVp, vKVg, vIW, vIR, vL4 = (V(i) for i in range(12, 23))
vOne, vTS, vB0, vB1, vFlag = (V(i) for i in range(23, 28))
RES = V(28, 10)
vB2, vB3 = V(38), V(39)
W2R = A(0, 140)
WPH = A(140, 12)


class Gen:
    def __init__(self, **opt):
        self.p = Prog()
        self.o = dict(stamps=0, stop=None, xdepth=10, sc='', sched={})
        self.o.update(opt)
        self.nstamp = 0
        self.stamp_names = []
        sched = dict(WO='p1_tail', W1E='kepi', W1A='qepi', W2X='img', W2R='p2_r3', W1L='p2_end', W2A='p3_B', W2B='p3_end',
                     WQ0='p4_tail')
        sched.update(self.o['sched'])
        self.sched = sched

    def e(self, x, tag=None):
        self.p.e(x, tag)

    def stamp(self, name):
        if not self.o['stamps']:
            return
        i = self.nstamp
        cur, prev = (sTSa, sTSb) if i & 1 == 0 else (sTSb, sTSa)
        if i:
            self.e(f'v_writelane_b32 {vTS}, {prev[0]}, {i - 1}')
        self.e(f's_memtime {cur}')
        self.stamp_names.append(name)
        self.nstamp += 1

    def stamp_flush(self):
        if not self.o['stamps']:
            return
        i = self.nstamp
        prev = sTSb if i & 1 == 0 else sTSa
        self.e(f'v_writelane_b32 {vTS}, {prev[0]}, {i - 1}')
        self.e(f'''s_lshl_b32 {sT0}, s2, 10
s_lshl_b32 {sT1}, {sW}, 8
s_add_u32 {sT0}, {sT0}, {sT1}
s_add_u32 {sT0}, {sT0}, {TS}''')
        self.e(f'buffer_store_dword {vTS}, {vL4}, {WSR}, {sT0} offen')

    def ld(self, dst, vaddr, off, fl='', so=None, tag=None):
        n = dst.n
        op = {1: 'dword', 2: 'dwordx2', 4: 'dwordx4'}[n]
        if so is None:
            so, o = K(off)
        else:
            o = off
        assert 0 <= o < 4096
        return Ins(f'buffer_load_{op} {dst}, {vaddr}, {WSR}, {so} offen offset:{o}{fl}', tag)

    def st(self, src, vaddr, so, off=0, fl=None, tag='st', srd_=WSR):
        op = {1: 'dword', 2: 'dwordx2', 4: 'dwordx4'}[src.n]
        if fl is None:
            fl = self.o['sc']
        assert 0 <= off < 4096
        return Ins(f'buffer_store_{op} {src}, {vaddr}, {srd_}, {so} offen offset:{off}{fl}', tag)

    def dma(self, smbase, lds_off, vaddr, sg, g_off, n, tag, tmp):
        out = []
        for i in range(n):
            grp = []
            if i == 0:
                grp.append(f's_add_u32 m0, {smbase}, {lds_off}')
                grp.append(f's_add_u32 {tmp}, {sg}, {g_off}')
            grp.append(Ins(f'buffer_load_dwordx4 {vaddr}, {WSR}, {tmp} offen offset:{i * 1024} lds', tag))
            out.append(grp)
        return out

    def poll(self, so, n, val):
        p = self.p
        L, D = p.newlabel('spin'), p.newlabel('ok')
        self.e(f'v_and_b32 {vB0}, {(n - 1) * 4}, {vL4}')
        p.label(L)
        self.e(f'buffer_load_dword {vB1}, {vB0}, {WSR}, {so} offen sc1')
        self.e('s_waitcnt vmcnt(0)')
        self.e(f'v_cmp_gt_u32 vcc, {val}, {vB1}')
        self.e(f's_cbranch_vccz {D}')
        self.e(f's_add_u32 {sSpin}, {sSpin}, 1\ns_cmp_lt_u32 {sSpin}, {SPIN_LIMIT}\ns_cbranch_scc1 {L}')
        p.label(D)

    def publish(self, so, val):
        self.e(f'v_mov_b32 {vFlag}, {val}')
        self.e('s_mov_b64 exec, 1')
        self.e(wait(vm='st'))
        self.e(f'buffer_store_dword {vFlag}, off, {WSR}, {so}{self.o["sc"]}', 'flag')
        self.e('s_mov_b64 exec, -1')

    def unit(self, name, layer):
        if name == 'WO':
            out = [[f'v_add_u32 {vB2}, {sWO}, {vL16}']]
            return out + [self.ld(W2R.q(i), vB2, i * 1024, tag='wo') for i in range(25)]
        if name == 'W1E':
            return (self.dma(sW4K, L_R0 + 80 * 1024, vW4, sW1, 80 * 1024, 4, 'w1', sD0) +
                    self.dma(sW4K, L_R0 + 96 * 1024, vW4, sW1, 96 * 1024, 4, 'w1', sD0) +
                    self.dma(sW1K, L_R0 + 112 * 1024, vT16, sW1, 112 * 1024, 1, 'w1', sD0))
        if name == 'W1A':
            out = []
            for b in range(5):
                out += self.dma(sW4K, L_R0 + b * 16384, vW4, sW1, b * 16384, 4, 'w1', sD0)
            return out
        if name == 'W1L':
            return (self.dma(sW1K, L_R0 + 116 * 1024, vT16, sW1, 116 * 1024, 1, 'w1', sD0) +
                    self.dma(sW4K, L_R0 + 120 * 1024, vW4, sW1O, 0, 4, 'w1', sD0) +
                    self.dma(sW1K, L_R0 + 136 * 1024, vT16, sW1O, 16384, 1, 'w1', sD0))
        if name == 'W2X':
            out = [[f'v_add_u32 {vB3}, {sW2}, {vL16}', f's_add_u32 {sD1}, {sDum}, 4096']]
            for c in range(5):
                out.append(self.ld(self.w2reg(0, c), vB3, c * 1024 if c < 4 else 0, so=sDum if c < 4 else sD1, tag='w2'))
            for c in range(5):
                out.append(self.ld(self.w2reg(1, c), vB3, 5120 + c * 1024, tag='w2'))
            return out
        if name == 'W2R':
            out = []
            for i, s in enumerate((2, 10, 11, 12, 13)):
                for c in range(5):
                    out.append(self.ld(self.w2reg(s, c), vB3, s * 5120 + c * 1024, tag='w2'))
            return out
        if name == 'W2A':
            out = []
            for b in range(5):
                out += self.dma(sLA, b * 4096, vL16, sW2, 3 * 5120 + b * 4096, 4, 'w2a', sD0)
            return out
        if name == 'W2B':
            out = []
            for b in range(4):
                out += self.dma(sLB, b * 4096, vL16, sW2, 7 * 5120 + b * 4096, 4 if b < 3 else 3, 'w2b', sD0)
            return out
        if name == 'WQ0':
            if layer == 1:
                return []
            return self.wq_chunk(0) + self.wq_chunk(1)
        raise ValueError(name)

    def wq_chunk(self, c):
        return self.dma(sW4K, L_R0 + c * 16384, vW4, sWQ, c * 16384, 4, f'wq{c}', sD0)

    def w2reg(self, s, c):
        slot = {2: 0, 10: 1, 11: 2, 12: 3, 13: 4, 0: 5, 1: 6}[s]
        return W2R.q(slot * 5 + c)

    def take(self, slot, layer):
        out = []
        for u, s in self.sched.items():
            if s == slot:
                out += self.unit(u, layer)
        return out

    def setup(self):
        e = self.e
        e('s_cmp_ge_u32 s2, 256\ns_cbranch_scc1 main_done')
        e('''s_load_dwordx2 s[4:5], s[0:1], 88
s_load_dwordx2 s[6:7], s[0:1], 72
s_load_dwordx2 s[92:93], s[0:1], 16
s_load_dwordx2 s[94:95], s[0:1], 48
s_load_dwordx2 s[96:97], s[0:1], 64''')
        self.stamp('start')
        t = [V(40 + i) for i in range(24)]
        vLane, vTok, vQ, vHH, vT32 = t[0], t[1], t[2], t[3], t[4]
        e(f'''s_and_b32 {sG}, s2, 7
s_lshr_b32 {sJ}, s2, 3
v_lshrrev_b32 {t[5]}, 6, v0
v_and_b32 {vLane}, 63, v0
v_readfirstlane_b32 {sW}, {t[5]}
v_lshlrev_b32 {vL16}, 4, {vLane}
v_lshlrev_b32 {vT16}, 4, v0
v_lshlrev_b32 {vL4}, 2, {vLane}
s_lshl_b32 {sW1K}, {sW}, 10
s_lshl_b32 {sW4K}, {sW}, 12
v_add_u32 {vW4}, {sW4K}, {vL16}
s_mul_i32 {sWQ}, {sJ}, 81920
s_add_u32 {sWQ}, {sWQ}, {WQ}
s_mov_b32 {sSpin}, 0''')
        for i in range(1, 18):
            e(f's_mov_b32 s{KBASE + i}, {i * 4096}')
        e(f'''v_and_b32 {vTok}, 15, {vLane}
v_lshrrev_b32 {vQ}, 4, {vLane}
v_lshrrev_b32 {vHH}, 5, {vLane}
v_and_b32 {vT32}, 31, {vLane}
v_lshlrev_b32 {vHH16}, 4, {vHH}
v_lshlrev_b32 {vQ16}, 4, {vQ}''')
        e(f'''s_lshl_b32 {sT0}, {sG}, 4
s_lshl_b32 {sT1}, {sW}, 2
s_add_u32 {sT0}, {sT0}, {sT1}
v_and_b32 {t[5]}, 1, {vQ}
v_add_u32 {t[5]}, {sT0}, {t[5]}
v_mul_u32_u24 {t[6]}, {XT}, {t[5]}
v_lshl_add_u32 {t[6]}, {vTok}, 4, {t[6]}
v_lshl_add_u32 {vXP1}, {vHH}, 8, {t[6]}
v_lshlrev_b32 {t[7]}, 10, {t[5]}
v_lshl_add_u32 {t[7]}, {vTok}, 4, {t[7]}
v_lshl_add_u32 {t[7]}, {vHH}, 9, {t[7]}
v_add_u32 {vSP1}, {ST}, {t[7]}''')
        assert XA == 0
        e(wait(lgkm='*'))
        srd(self.p, 8, 4, WS_BYTES)
        e(self.wq_chunk(0))
        self.p1_first_loads()
        e(self.wq_chunk(1))
        CQ = V(208, 16)
        e(f's_lshl_b32 {sT1}, {sJ}, 12\ns_add_u32 {sT1}, {sT1}, {CSQ}')
        for i in range(4):
            e(self.ld(CQ.q(i), vL16, i * 1024, so=sT1))
        srd(self.p, 12, 6, 2048 * 1280)
        e(f'''s_mul_i32 {sT1}, {sJ}, 5
s_lshr_b32 {sT1}, {sT1}, 1
s_and_b32 {sT2}, {sJ}, 1
s_add_u32 {sT3}, {sT1}, {sT2}
s_lshl_b32 {sT3}, {sT3}, 8
s_add_u32 {sT3}, {sT3}, {OB}
v_add_u32 {vOA}, {sT3}, {vXP1}
s_lshl_b32 {sT1}, {sT1}, 8
s_cmp_eq_u32 {sT2}, 1
s_cselect_b32 {sT2}, 8, 512
s_add_u32 {sT1}, {sT1}, {sT2}
s_add_u32 {sT1}, {sT1}, {OB}
v_add_u32 {vOL}, {sT1}, {t[6]}
v_lshl_add_u32 {vOL}, {vHH}, 25, {vOL}''')
        assert OOB == 1 << 25
        e(f'''s_lshr_b32 {sTB}, {sJ}, 3
s_and_b32 {sCS}, {sJ}, 7
s_lshr_b32 {sTH}, {sJ}, 4
s_and_b32 {sFS}, {sJ}, 15
s_lshl_b32 {sT0}, {sG}, 4
s_lshl_b32 {sT1}, {sTB}, 2
s_add_u32 {sT0}, {sT0}, {sT1}''')
        e(f'''s_mul_i32 {sT3}, {sW}, 13
s_min_u32 {sT1}, {sW}, 1
s_add_u32 {sT3}, {sT3}, {sT1}
s_cmp_ge_u32 {sW}, 2
s_cselect_b32 {sDum}, {OOB}, 0''')
        for u in range(4):
            e(f'''s_add_u32 {sT1}, {sW}, {u + 1}
s_and_b32 {sT1}, {sT1}, 3
s_add_u32 {sT1}, {sT1}, {sT0}
s_mul_i32 {sOl[u]}, {sT1}, {XT}
s_mul_i32 {sT2}, {sW}, 5120
s_add_u32 {sOl[u]}, {sOl[u]}, {sT2}
s_add_u32 {sOl[u]}, {sOl[u]}, {OB}
s_mul_i32 {sHl[u]}, {sT1}, {HT}
s_lshl_b32 {sT2}, {sT3}, 10
s_add_u32 {sHl[u]}, {sHl[u]}, {sT2}
s_add_u32 {sHl[u]}, {sHl[u]}, {HB}''')
        e(f'''s_mul_i32 {sW2}, {sCS}, {54 * 5120}
s_mul_i32 {sT2}, {sT3}, 5120
s_add_u32 {sW2}, {sW2}, {sT2}
s_add_u32 {sW2}, {sW2}, {W2P}
s_mul_i32 {sWO}, {sCS}, {20 * 5120}
s_mul_i32 {sT2}, {sW}, 25600
s_add_u32 {sWO}, {sWO}, {sT2}
s_add_u32 {sWO}, {sWO}, {WO}
s_add_u32 {sT0}, {sT0}, {sW}
s_mul_i32 {sXo}, {sT0}, {XT}
s_mul_i32 {sT2}, {sCS}, 160
s_add_u32 {sOut}, {sXo}, {sT2}
s_mul_i32 {sT2}, {sCS}, 2560
s_add_u32 {sXo}, {sXo}, {sT2}
s_lshl_b32 {sSTo}, {sT0}, 10
s_lshr_b32 {sT2}, {sCS}, 2
s_lshl_b32 {sT2}, {sT2}, 8
s_add_u32 {sSTo}, {sSTo}, {sT2}
s_and_b32 {sT2}, {sCS}, 3
s_lshl_b32 {sT2}, {sT2}, 2
s_add_u32 {sSTo}, {sSTo}, {sT2}
s_add_u32 {sSTo}, {sSTo}, {ST}
s_mul_i32 {sLA}, {sW}, 20480
s_add_u32 {sLA}, {sLA}, {L_R0}
s_mul_i32 {sLB}, {sW}, 15360
s_add_u32 {sLB}, {sLB}, {L_R1}
v_lshlrev_b32 {vX4}, 8, {vHH}
v_lshl_add_u32 {vX4}, {vTok}, 4, {vX4}
v_and_b32 {t[5]}, 1, {vQ}
v_lshl_add_u32 {vX4}, {t[5]}, 3, {vX4}
v_lshlrev_b32 {vSTs}, 9, {vHH}
v_lshl_add_u32 {vSTs}, {vTok}, 4, {vSTs}''')
        e(self.ld(RES[0:4], vL16, 0, so=sXo))
        e(self.ld(RES[4:8], vL16, 1024, so=sXo))
        e(self.ld(RES[8:10], vX4, 2048, so=sXo))
        pb = [p3_blocks(f)[0] for f in range(16)]
        ot = [(255 if p3_blocks(f)[1] is None else 2 * p3_blocks(f)[1] + p3_blocks(f)[2]) for f in range(16)]
        for tab, dst in ((pb, sT0), (ot, sT1)):
            wds = [sum(tab[4 * q + i] << (8 * i) for i in range(4)) for q in range(4)]
            e(f's_mov_b32 {dst}, {wds[0]}')
            for q in range(1, 4):
                e(f's_cmp_ge_u32 {sFS}, {4 * q}\ns_cselect_b32 {dst}, {wds[q]}, {dst}')
            e(f's_and_b32 {sT2}, {sFS}, 3\ns_lshl_b32 {sT2}, {sT2}, 3\ns_lshr_b32 {dst}, {dst}, {sT2}\ns_and_b32 {dst}, {dst}, 255')
        e(f'''s_mul_i32 {sW1}, {sT0}, 40960
s_add_u32 {sW1}, {sW1}, {W1P}
s_mul_i32 {sW1O}, {sT1}, 20480
s_add_u32 {sW1O}, {sW1O}, {W1P}
s_lshl_b32 {sT2}, {sG}, 4
s_lshl_b32 {sT3}, {sTH}, 3
s_add_u32 {sT2}, {sT2}, {sT3}
s_lshl_b32 {sT3}, {sW}, 1
s_add_u32 {sT2}, {sT2}, {sT3}
s_mul_i32 {sX3}, {sT2}, {XT}
s_lshl_b32 {sST3}, {sT2}, 10
s_add_u32 {sST3}, {sST3}, {ST}
s_mul_i32 {sT2}, {sT2}, {HT}
s_add_u32 {sT2}, {sT2}, {HB}
s_lshl_b32 {sT3}, {sT0}, 10
s_add_u32 {sHo}, {sT2}, {sT3}
s_lshr_b32 {sT3}, {sT1}, 1
s_lshl_b32 {sT3}, {sT3}, 10
s_add_u32 {sHoO}, {sT2}, {sT3}
s_and_b32 {sT3}, {sT1}, 1
s_lshl_b32 {sT3}, {sT3}, 3
s_add_u32 {sHoO}, {sHoO}, {sT3}
s_cmp_eq_u32 {sT1}, 255
s_cselect_b32 {sW1O}, {OOB}, {sW1O}
s_cselect_b32 {sHoO}, {OOB}, {sHoO}''')
        C1 = V(232, 8)
        BB = V(240, 4)
        e(f'''v_lshrrev_b32 {t[5]}, 2, {vT32}
s_lshl_b32 {sT2}, {sT0}, 1
v_add_u32 {t[6]}, {sT2}, {t[5]}
v_mov_b32 {t[7]}, {sT1}
v_cmp_gt_u32 vcc, 6, {t[5]}
v_cndmask_b32 {t[6]}, {t[7]}, {t[6]}, vcc
v_and_b32 {t[7]}, 3, {vLane}
v_lshlrev_b32 {t[8]}, 6, {t[6]}
v_lshl_add_u32 {t[8]}, {t[7]}, 4, {t[8]}
v_mul_u32_u24 {t[9]}, {108 * 64}, {vHH}
v_add_u32 {t[8]}, {t[8]}, {t[9]}
v_mov_b32 {t[9]}, {OOB}
v_cmp_gt_u32 vcc, 108, {t[6]}
v_cndmask_b32 {t[8]}, {t[9]}, {t[8]}, vcc
s_mov_b32 {sT2}, {CS1}
s_mov_b32 {sT3}, {CS1 + 2 * 108 * 64}''')
        e(self.ld(C1[0:4], t[8], 0, so=sT2))
        e(self.ld(C1[4:8], t[8], 0, so=sT3))
        srd(self.p, 16, 94, 1728 * 2)
        e(f'''v_lshrrev_b32 {t[9]}, 1, {t[6]}
v_lshlrev_b32 {t[9]}, 6, {t[9]}
v_lshl_add_u32 {t[9]}, {t[7]}, 4, {t[9]}
v_and_b32 {t[10]}, 1, {t[6]}
v_lshl_add_u32 {t[9]}, {t[10]}, 3, {t[9]}''')
        e(f'buffer_load_dwordx2 {BB[0:2]}, {t[9]}, s[16:19], 0 offen')
        e(f'''v_lshrrev_b32 {t[9]}, 1, {t[5]}
v_lshlrev_b32 {t[9]}, 6, {t[9]}
v_and_b32 {t[10]}, 1, {t[5]}
v_lshl_add_u32 {t[9]}, {t[10]}, 3, {t[9]}
v_lshl_add_u32 {t[10]}, {t[7]}, 4, {t[9]}
v_lshl_add_u32 {t[9]}, {t[7]}, 3, {t[9]}
v_cmp_gt_u32 vcc, 4, {t[5]}
v_cndmask_b32 {t[9]}, {t[9]}, {t[10]}, vcc
s_mul_i32 {sT2}, {sCS}, 160''')
        srd(self.p, 16, 96, 640 * 2)
        e(f'buffer_load_dwordx2 {BB[2:4]}, {t[9]}, s[16:19], {sT2} offen')
        WT = V(244, 12)
        e(f'''v_and_b32 {t[9]}, 3, {vLane}
v_lshrrev_b32 {t[10]}, 3, {vT32}
v_lshl_add_u32 {t[9]}, {t[10]}, 2, {t[9]}
v_bfe_u32 {t[10]}, {vLane}, 2, 1
v_mad_u32_u24 {t[10]}, {t[10]}, 10, {t[9]}
v_lshlrev_b32 {t[10]}, 1, {t[10]}
v_mov_b32 {t[11]}, 0x10000
v_cmp_gt_u32 vcc, 10, {t[9]}
v_cndmask_b32 {t[10]}, {t[11]}, {t[10]}, vcc
v_mul_u32_u24 {t[11]}, 320, {vHH}
v_add_u32 {t[11]}, {t[11]}, {t[10]}
s_mul_i32 {sT2}, {sJ}, 800''')
        srd(self.p, 16, 92, 32 * 800)
        for i in range(8):
            e(f'buffer_load_ushort {WT[i]}, {t[11]}, s[16:19], {sT2} offen offset:{i * 40}')
        for i in range(4):
            e(f'buffer_load_ushort {WT[8 + i]}, {t[10]}, s[16:19], {sT2} offen offset:{(16 + i) * 40}')
        e(f'''s_lshl_b32 {sT0}, {sG}, 13
s_add_u32 {sT0}, {sT0}, {FL}
s_lshl_b32 {sT1}, {sTB}, 7
s_lshl_b32 {sT2}, {sCS}, 4
s_add_u32 {sT1}, {sT1}, {sT2}
s_lshl_b32 {sT2}, {sW}, 2
s_add_u32 {sT1}, {sT1}, {sT2}
s_add_u32 {sF1p}, {sT0}, {sT1}
s_lshl_b32 {sT1}, {sW}, 7
s_add_u32 {sF1c}, {sT0}, {sT1}
s_lshl_b32 {sT1}, {sTB}, 9
s_lshl_b32 {sT2}, {sW}, 7
s_add_u32 {sT1}, {sT1}, {sT2}
s_lshl_b32 {sT2}, {sCS}, 2
s_add_u32 {sT1}, {sT1}, {sT2}
s_add_u32 {sT1}, {sT1}, {F3}
s_add_u32 {sF3p}, {sT0}, {sT1}
s_lshl_b32 {sT1}, {sW}, 9
s_lshl_b32 {sT2}, {sTB}, 7
s_add_u32 {sT1}, {sT1}, {sT2}
s_add_u32 {sT1}, {sT1}, {F3}
s_add_u32 {sF3c}, {sT0}, {sT1}
s_lshr_b32 {sD0}, {sW}, 1
s_lshl_b32 {sD0}, {sD0}, 7
s_and_b32 {sD1}, {sW}, 1
s_lshl_b32 {sD1}, {sD1}, 2
s_add_u32 {sD0}, {sD0}, {sD1}
s_lshl_b32 {sT1}, {sTB}, 8
s_lshl_b32 {sT2}, {sCS}, 3
s_add_u32 {sT1}, {sT1}, {sT2}
s_add_u32 {sT1}, {sT1}, {sD0}
s_add_u32 {sT1}, {sT1}, {F4}
s_add_u32 {sF4p}, {sT0}, {sT1}
s_lshl_b32 {sT1}, {sTH}, 9
s_lshl_b32 {sT2}, {sW}, 7
s_add_u32 {sT1}, {sT1}, {sT2}
s_add_u32 {sT1}, {sT1}, {F4}
s_add_u32 {sF4c}, {sT0}, {sT1}
s_lshr_b32 {sT1}, {sJ}, 2
s_lshl_b32 {sT1}, {sT1}, 8
s_and_b32 {sT2}, {sJ}, 3
s_lshl_b32 {sT2}, {sT2}, 3
s_add_u32 {sT1}, {sT1}, {sT2}
s_add_u32 {sT1}, {sT1}, {sD0}
s_add_u32 {sT1}, {sT1}, {F5}
s_add_u32 {sF5p}, {sT0}, {sT1}
s_lshl_b32 {sT1}, {sTH}, 10
s_lshl_b32 {sT2}, {sW}, 8
s_add_u32 {sT1}, {sT1}, {sT2}
s_and_b32 {sT2}, {sTB}, 1
s_lshl_b32 {sT2}, {sT2}, 7
s_add_u32 {sT1}, {sT1}, {sT2}
s_add_u32 {sT1}, {sT1}, {F5}
s_add_u32 {sF5c}, {sT0}, {sT1}''')
        e(f'''v_lshlrev_b32 {t[5]}, 4, {vT32}
v_add_u32 {t[5]}, {sW1K}, {t[5]}
v_add_u32 {t[5]}, {L_SCR}, {t[5]}
v_mul_u32_u24 {t[6]}, {PS}, {vHH}
v_add_u32 {vPW}, {t[5]}, {t[6]}
v_add_u32 {vVW}, {vPW}, {t[6]}
v_lshl_add_u32 {vBW}, {vHH}, 3, {t[5]}
v_lshrrev_b32 {t[5]}, 2, {vLane}
v_lshlrev_b32 {t[5]}, 4, {t[5]}
v_add_u32 {t[5]}, {L_SCR}, {t[5]}
v_and_b32 {t[6]}, 1, {vLane}
v_bfe_u32 {t[8]}, {vLane}, 1, 1
v_lshl_add_u32 {t[9]}, {t[6]}, 3, {t[5]}
v_cmp_eq_u32 vcc, 0, {t[8]}
v_add_u32 {t[10]}, {4 * PS}, {t[9]}
v_add_u32 {t[11]}, {5 * PS}, {t[5]}
v_cndmask_b32 {vTB0}, {t[11]}, {t[10]}, vcc
v_add_u32 {t[10]}, {6 * PS}, {t[9]}
v_add_u32 {t[11]}, {5 * PS + 8}, {t[5]}
v_cndmask_b32 {vTB1}, {t[11]}, {t[10]}, vcc
v_mul_u32_u24 {t[10]}, {PS}, {t[8]}
v_add_u32 {t[10]}, {t[10]}, {t[9]}
s_mul_i32 {sT1}, {sW}, {2 * PS}
v_add_u32 {t[10]}, {sT1}, {t[10]}
v_lshl_add_u32 {t[11]}, {t[8]}, 3, {t[5]}
v_add_u32 {t[11]}, {7 * PS}, {t[11]}
v_cmp_gt_u32 vcc, 128, v0
v_cndmask_b32 {vTA}, {t[11]}, {t[10]}, vcc''')
        e(f'''v_lshrrev_b32 {t[5]}, 4, v0
v_add_u32 {t[6]}, 8, {vHH}
v_cndmask_b32 {t[5]}, {t[6]}, {t[5]}, vcc
v_mad_u32_u24 {t[5]}, {t[5]}, 12, {vTok}
v_lshlrev_b32 {t[5]}, 4, {t[5]}
v_mov_b32 {t[9]}, {OOB}
v_and_b32 {t[6]}, 0x50, v0
v_cndmask_b32 {t[6]}, {t[6]}, 0, vcc
v_cmp_eq_u32 vcc, 0, {t[6]}
v_cndmask_b32 {t[5]}, {t[9]}, {t[5]}, vcc
v_cmp_gt_u32 vcc, 12, {vTok}
v_cndmask_b32 {vKVp}, {t[9]}, {t[5]}, vcc
s_lshl_b32 {sT1}, {sJ}, 14
s_add_u32 {sT1}, {sT1}, {KV}
s_lshl_b32 {sT2}, {sG}, 11
s_add_u32 {sKVp}, {sT1}, {sT2}
v_lshlrev_b32 {t[5]}, 3, v0
v_add_u32 {t[5]}, {sT1}, {t[5]}
v_cmp_gt_u32 vcc, 240, v0
v_cndmask_b32 {vKVg}, {t[9]}, {t[5]}, vcc''')
        e(f'''v_mul_u32_u24 {t[5]}, 2731, v0
v_lshrrev_b32 {t[5]}, 16, {t[5]}
v_mul_u32_u24 {t[6]}, 24, {t[5]}
v_sub_u32 {t[6]}, v0, {t[6]}
v_lshrrev_b32 {t[8]}, 1, {t[6]}
v_and_b32 {t[9]}, 1, {t[6]}
v_and_b32 {t[10]}, 3, {t[8]}
v_lshrrev_b32 {t[8]}, 2, {t[8]}
v_lshl_add_u32 {t[10]}, {t[8]}, 3, {t[10]}
v_lshl_add_u32 {t[10]}, {t[9]}, 2, {t[10]}
v_cmp_eq_u32 vcc, 17, {t[6]}
v_cndmask_b32 {t[10]}, {t[10]}, 28, vcc
v_cmp_eq_u32 vcc, 19, {t[6]}
v_cndmask_b32 {t[10]}, {t[10]}, 24, vcc
v_lshlrev_b32 {t[8]}, 1, {t[5]}
v_subrev_u32 {t[8]}, 8, {t[8]}
v_cmp_gt_u32 vcc, 8, {t[5]}
v_cndmask_b32 {t[5]}, {t[8]}, {t[5]}, vcc
v_lshrrev_b32 {t[8]}, 1, {t[5]}
v_lshlrev_b32 {t[8]}, 9, {t[8]}
v_lshl_add_u32 {t[8]}, {t[10]}, 4, {t[8]}
v_and_b32 {t[5]}, 1, {t[5]}
v_lshl_add_u32 {t[8]}, {t[5]}, 3, {t[8]}
v_add_u32 {vIW}, {IMG}, {t[8]}
v_add_u32 {vIR}, {IMG}, {vL16}
v_mul_u32_u24 {vOne}, 0x3f80, {vHH}
v_lshl_add_u32 {vOne}, {vOne}, 16, {vOne}''')
        for i in range(1, 4):
            for h in range(2):
                e(f'v_pk_add_f32 {CQ[2*h:2*h+2]}, {CQ[2*h:2*h+2]}, {CQ[4*i+2*h:4*i+2*h+2]}')
        for sw in ('v_permlane32_swap_b32', 'v_permlane16_swap_b32'):
            for i in range(4):
                e(f'v_mov_b32 {CQ[4+i]}, {CQ[i]}')
            for i in range(4):
                e(f'{sw} {CQ[i]}, {CQ[4+i]}')
            for h in range(2):
                e(f'v_pk_add_f32 {CQ[2*h:2*h+2]}, {CQ[2*h:2*h+2]}, {CQ[4+2*h:6+2*h]}')
        e(f'v_lshlrev_b32 {t[5]}, 4, {vTok}')
        e(f'ds_write_b128 {t[5]}, {CQ[0:4]} offset:{L_CQ}')
        for h in range(2):
            e(f'v_pk_add_f32 {C1[2*h:2*h+2]}, {C1[2*h:2*h+2]}, {C1[4+2*h:6+2*h]}')
        for i in range(4):
            e(f'v_mov_b32 {C1[4+i]}, {C1[i]}')
        for i in range(4):
            e(f'v_permlane32_swap_b32 {C1[i]}, {C1[4+i]}')
        for h in range(2):
            e(f'v_pk_add_f32 {C1[2*h:2*h+2]}, {C1[2*h:2*h+2]}, {C1[4+2*h:6+2*h]}')
        e(f'''v_lshlrev_b32 {t[5]}, 4, {vT32}
v_cmp_gt_u32 vcc, 28, {vT32}
v_mov_b32 {t[6]}, 1280
v_cndmask_b32 {t[8]}, {t[6]}, {t[5]}, vcc
v_cmp_gt_u32 vcc, 20, {vT32}
v_mov_b32 {t[6]}, 512
v_cndmask_b32 {t[9]}, {t[6]}, {t[5]}, vcc''')
        e(f'ds_write_b128 {t[8]}, {C1[0:4]} offset:{L_C1}')
        U = V(56, 8)
        for k in range(2):
            for i in range(2):
                e(f'v_lshlrev_b32 {U[4*k+2*i]}, 16, {BB[2*k+i]}')
                e(f'v_and_b32 {U[4*k+2*i+1]}, 0xffff0000, {BB[2*k+i]}')
        e(f'ds_write_b128 {t[8]}, {U[0:4]} offset:{L_B1}')
        e(f'ds_write_b128 {t[9]}, {U[4:8]} offset:{L_B2}')
        for i in range(6):
            e(f'v_lshl_or_b32 {WT[2*i]}, {WT[2*i+1]}, 16, {WT[2*i]}')
        for i in range(4):
            e(f'v_accvgpr_write_b32 {WPH[i]}, {WT[2*i]}')
        e(f'v_cmp_eq_u32 vcc, 0, {vHH}')
        for i in range(2):
            e(f'v_cndmask_b32 {t[5]}, 0, {WT[8+2*i]}, vcc')
            e(f'v_cndmask_b32 {t[6]}, {WT[8+2*i]}, 0, vcc')
            e(f'v_accvgpr_write_b32 {WPH[4+i]}, {t[5]}')
            e(f'v_accvgpr_write_b32 {WPH[8+i]}, {t[6]}')
            e(f'v_accvgpr_write_b32 {WPH[6+i]}, 0')
            e(f'v_accvgpr_write_b32 {WPH[10+i]}, 0')

    P1ACC = V(40, 64)
    P1XR = V(104, 80)
    P1WF = V(184, 24)
    P1SL = V(184, 16)
    P1C = V(224, 8)

    def p1_xload(self, n):
        s, T = divmod(n, 2)
        D = self.o['xdepth']
        return self.ld(self.P1XR.q(n % (2 * D)), vXP1, T * 2 * XT + s * 512, ' sc1', tag='x')

    def p1_first_loads(self):
        for T in range(2):
            for i in range(2):
                self.e(self.ld(self.P1SL.q(2 * T + i), vSP1, T * 2048 + i * 256, ' sc1'))
        for n in range(2 * self.o['xdepth']):
            self.e(self.p1_xload(n))

    def stats_finish(self, a, b, rstd, nmean):
        inv = '0x3acccccd'
        return [f'v_mul_f32 {nmean}, 0xbacccccd, {a}',
                f'v_mul_f32 {a}, {nmean}, {nmean}',
                f'v_fmac_f32 {a}, 0xbacccccd, {b}',
                f'v_min_f32 {a}, 0, {a}',
                f'v_sub_f32 {a}, 0x3727c5ac, {a}',
                f'v_rsq_f32 {rstd}, {a}']

    def p1_main(self, layer):
        e = self.e
        ACC, XR, WF, SL, C = self.P1ACC, self.P1XR, self.P1WF, self.P1SL, self.P1C
        D = self.o['xdepth']
        acc = lambda T, t: ACC.q(2 * T + t, 16)
        for t in range(2):
            for rq in range(4):
                e(f'ds_read_b128 {acc(0, t).q(rq)}, {vHH16} offset:{L_CQ + t * 128 + rq * 32}')
        seqs = []
        for T in range(2):
            L = SL.q(T, 8)
            seqs.append([f'v_pk_add_f32 {L[0:2]}, {L[0:2]}, {L[2:4]}',
                         f'v_pk_add_f32 {L[4:6]}, {L[4:6]}, {L[6:8]}',
                         f'v_pk_add_f32 {L[0:2]}, {L[0:2]}, {L[4:6]}',
                         f'v_add_f32 {L[0]}, {L[0]}, {L[1]}',
                         f'v_mov_b32 {L[1]}, {L[0]}',
                         f'v_permlane32_swap_b32 {L[0]}, {L[1]}'] +
                        self.stats_finish(L[0], L[1], C[4 * T], C[4 * T + 2]) +
                        [f'v_mul_f32 {C[4*T+1]}, {LOG2E}, {C[4*T]}'])
        for a, b in zip(*seqs):
            e(a)
            e(b)
        for T in (1, 0):
            for i in range(16):
                e(f'v_pk_mul_f32 {ACC[32*T+2*i:32*T+2*i+2]}, {ACC[2*i:2*i+2]}, {C[4*T+2:4*T+4]} op_sel_hi:[1,0]')
        self.stamp(f'p1_go{layer}')
        e(f'v_add_u32 {vB0}, {L_R0}, {vL16}\nv_add_u32 {vB1}, {L_R0 + 40960}, {vL16}')

        def wread(s):
            out = []
            if s % 8 == 0:
                out += [wait(vm=f'wq{s // 8}'), 's_barrier']
            for t in range(2):
                off = s * 2048 + t * 1024
                b, off = (vB0, off) if off < 40960 else (vB1, off - 40960)
                out.append(f'ds_read_b128 {WF.q((2 * s + t) % 6)}, {b} offset:{off}')
            return out
        e(wread(0))
        e(wread(1))
        tail = self.take('p1_tail', layer)
        wq = []
        for c in range(2, 5):
            wq += self.wq_chunk(c)
        for s in range(40):
            m = [f'{M32} {acc(T, t)}, {WF.q((2 * s + t) % 6)}, {XR.q((2 * s + T) % (2 * D))}, {acc(T, t)}' for T in range(2) for t in range(2)]
            wr = wread(s + 2) if s + 2 < 40 else []
            e(m[0])
            e(wr[:-1])
            e(m[1])
            if s + D < 40:
                e(self.p1_xload(2 * (s + D)))
            elif tail:
                e(tail.pop(0))
            e(m[2])
            e(wr[-1:])
            if s % 2 == 0 and wq:
                e(wq.pop(0))
            elif s + D >= 40 and tail:
                e(tail.pop(0))
            e(m[3])
            if s + D < 40:
                e(self.p1_xload(2 * (s + D) + 1))
            elif tail:
                e(tail.pop(0))
        assert not wq
        e(tail)
        self.stamp(f'p1_mm{layer}')

    def softmax(self, P, Sc, E, X, OUT):
        a, b = X[0], X[1]
        o = [f'v_max3_f32 {a}, {P[0]}, {P[1]}, {P[2]}', f'v_max3_f32 {b}, -{P[0]}, -{P[1]}, -{P[2]}']
        for i in (3, 5, 7):
            o += [f'v_max3_f32 {a}, {a}, {P[i]}, {P[i+1]}', f'v_max3_f32 {b}, {b}, -{P[i]}, -{P[i+1]}']
        o += [f'v_max_f32 {a}, {a}, {P[9]}', f'v_max_f32 {b}, {b}, -{P[9]}',
              f'v_permlane32_swap_b32 {a}, {b}',
              f'v_max_f32 {X[2]}, {a}, {b}',
              f'v_mul_f32 {a}, -{X[2]}, {Sc[1]}',
              f'v_mul_f32 {b}, -{X[2]}, {Sc[1]}',
              f'v_permlane32_swap_b32 {a}, {b}']
        for i in range(0, 10, 2):
            o.append(f'v_pk_fma_f32 {E[i:i+2]}, {Sc}, {P[i:i+2]}, {X[0:2]} op_sel:[1,0,0] op_sel_hi:[1,1,0]')
            o.append(f'v_pk_fma_f32 {E[10+i:12+i]}, {Sc}, {P[i:i+2]}, {X[0:2]} op_sel:[1,0,1] op_sel_hi:[1,1,1] neg_lo:[1,0,0] neg_hi:[1,0,0]')
        for i in range(20):
            o.append(f'v_exp_f32 {E[i]}, {E[i]}')
        o += [f'v_pk_add_f32 {X[0:2]}, {E[0:2]}, {E[2:4]}', f'v_pk_add_f32 {X[2:4]}, {E[10:12]}, {E[12:14]}']
        for i in (4, 6, 8):
            o += [f'v_pk_add_f32 {X[0:2]}, {X[0:2]}, {E[i:i+2]}', f'v_pk_add_f32 {X[2:4]}, {X[2:4]}, {E[10+i:12+i]}']
        o += [f'v_add_f32 {a}, {X[0]}, {X[1]}', f'v_add_f32 {b}, {X[2]}, {X[3]}',
              f'v_permlane32_swap_b32 {a}, {b}',
              f'v_add_f32 {a}, {a}, {b}',
              f'v_rcp_f32 {a}, {a}',
              f'v_mov_b32 {b}, {a}',
              f'v_permlane32_swap_b32 {a}, {b}']
        for i in range(0, 20, 2):
            sel = 'op_sel_hi:[0,1]' if i < 10 else 'op_sel:[1,0] op_sel_hi:[1,1]'
            o.append(f'v_pk_mul_f32 {E[i:i+2]}, {X[0:2]}, {E[i:i+2]} {sel}')
            o.append(f'v_cvt_pk_bf16_f32 {OUT[i//2]}, {E[i]}, {E[i+1]}')
        return o

    def p1_epilogue(self, layer):
        e, p = self.e, self.p
        ACC, C = self.P1ACC, self.P1C
        acc = lambda T, t: ACC.q(2 * T + t, 16)
        PK = V(104, 32)
        KA, MX, QA, VA = [[PK.q(4 * T + i) for T in range(2)] for i in range(4)]
        PP = V(136, 32)
        EE = V(168, 40)
        XX = V(208, 8)
        PH = V(232, 24)
        cvt = lambda d, s: [f'v_cvt_pk_bf16_f32 {d[i]}, {s[2*i]}, {s[2*i+1]}' for i in range(d.n)]
        rs = lambda T: C[4 * T:4 * T + 2]
        seqs = []
        for T in range(2):
            a0, a1 = acc(T, 0), acc(T, 1)
            P = PP.q(T, 16)
            s = cvt(KA[T], a0[0:8])
            s += [f'v_pk_mul_f32 {a1[i:i+2]}, {a1[i:i+2]}, {rs(T)} op_sel_hi:[1,0]' for i in (12, 14)]
            s += cvt(MX[T], a1[8:16])
            s += [f'v_or_b32 {MX[T][2]}, {vOne}, {MX[T][2]}']
            s += [f'{M32} {P}, {WPH.q(0)}, {KA[T]}, 0', f'{M32} {P}, {WPH.q(1)}, {MX[T]}, {P}']
            s += [f'v_pk_mul_f32 {a0[i:i+2]}, {a0[i:i+2]}, {rs(T)} op_sel_hi:[1,0]' for i in (8, 10, 12, 14)]
            s += cvt(VA[T], a0[8:16])
            s += [Ins(f'ds_write_b128 {vVW}, {VA[T]} offset:{4 * PS + T * 512}', 'kw'),
                  Ins(f'ds_write_b64 {vBW}, {MX[T][2:4]} offset:{5 * PS + T * 512}', 'kw')]
            s += cvt(QA[T], a1[0:8])
            O = PH.q(T, 12)
            s += self.softmax(P, rs(T), EE.q(T, 20), XX.q(T), O)
            s += [Ins(f'ds_write_b128 {vPW}, {O[0:4]} offset:{T * 512}', 'kw'),
                  Ins(f'ds_write_b128 {vPW}, {O[4:8]} offset:{2 * PS + T * 512}', 'kw'),
                  Ins(f'ds_write_b64 {vBW}, {O[8:10]} offset:{7 * PS + T * 512}', 'kw')]
            seqs.append(s)
        body = [x for ab in zip(*seqs) for x in ab]
        e(weave(body, self.take('kepi', layer), 0, len(body) // 2))
        for T in range(2):
            P = PP.q(T, 16)
            e(f'{M32} {P}, {WPH.q(0)}, {QA[T]}, 0')
            e(f'{M32} {P}, {WPH.q(2)}, {MX[T]}, {P}')
        e(wait(lgkm='kw'))
        e('s_barrier')
        self.stamp(f'kepi{layer}')
        FA, FB = V(40, 32), V(72, 32)
        FB1 = V(168, 32)
        KD = V(200, 8)
        rd = []
        for ks in range(8):
            g = []
            for dst, a in ((FA, vTA), (FB, vTB0), (FB1, vTB1)):
                for jj in range(2):
                    g.append(f'ds_read_b64_tr_b16 {dst.q(ks)[2*jj:2*jj+2]}, {a} offset:{ks * 512 + jj * 256}')
            rd.append(g)
        e(rd[0])
        e(rd[1])
        for ks in range(8):
            nx = rd[ks + 2] if ks + 2 < 8 else []
            e(f'{M16} {KD.q(0)}, {FA.q(ks)}, {FB.q(ks)}, {KD.q(0) if ks else 0}')
            e(nx[:3])
            e(f'{M16} {KD.q(1)}, {FA.q(ks)}, {FB1.q(ks)}, {KD.q(1) if ks else 0}')
            e(nx[3:])
        KO = V(40, 4)
        e(cvt(KO, KD))
        for i in range(4):
            e(f'v_min_u32 {KO[i]}, -2, {KO[i]}')
        if layer:
            e(f's_add_u32 {sKVp}, {sKVp}, 0x80000\nv_add_u32 {vKVg}, 0x80000, {vKVg}')
        e(self.st(KO, vKVp, sKVp, 0, ' sc1', 'kv'))
        self.stamp(f'kvst{layer}')
        seqs = []
        for T in range(2):
            O = PH.q(T, 12)
            seqs.append(self.softmax(PP.q(T, 16), rs(T), EE.q(T, 20), XX.q(T), O) +
                        [f'v_mov_b32 {O[10]}, 0', f'v_mov_b32 {O[11]}, 0'])
        body = [x for ab in zip(*seqs) for x in ab]
        e(weave(body, self.take('qepi', layer), 0, len(body) // 2))
        self.stamp(f'qepi{layer}')
        G = V(48, 16)
        GS = V(64, 4)
        KF = V(72, 12)
        e(f'v_mov_b32 {vB0}, 0x3f80\nv_mov_b32 {vB1}, 0x3f800000\nv_mov_b32 {KF[10]}, 0\nv_mov_b32 {KF[11]}, 0')
        L, Dn = p.newlabel('kvspin'), p.newlabel('kvok')
        p.label(L)
        for i in range(8):
            e(self.ld(G.q(i, 2), vKVg, i * 2048, ' sc1'))
        t = XX[0]
        e(f'v_max_u32 {t}, {G[0]}, {G[1]}')
        for h in range(2):
            e(f'v_dot2_f32_bf16 {GS[2*h]}, {G[h]}, {vB0}, 0')
            e(f'v_dot2_f32_bf16 {GS[2*h+1]}, {G[h]}, {vB1}, 0')
        for i in range(1, 8):
            e(f'v_max3_u32 {t}, {t}, {G[2*i]}, {G[2*i+1]}')
            if i == 7:
                e(f'v_cmp_eq_u32 vcc, -1, {t}')
            for h in range(2):
                e(f'v_dot2_f32_bf16 {GS[2*h]}, {G[2*i+h]}, {vB0}, {GS[2*h]}')
                e(f'v_dot2_f32_bf16 {GS[2*h+1]}, {G[2*i+h]}, {vB1}, {GS[2*h+1]}')
        e(f's_cbranch_vccz {Dn}')
        e(f's_add_u32 {sSpin}, {sSpin}, 1\ns_cmp_lt_u32 {sSpin}, {SPIN_LIMIT}\ns_cbranch_scc1 {L}')
        p.label(Dn)
        e('s_nop 1')
        e(cvt(G[0:2], GS))
        e(f'ds_write_b64 {vIW}, {G[0:2]}', 'iw')
        self.stamp(f'gath{layer}')
        e(self.take('img', layer))
        e(wait(lgkm='iw'))
        e('s_barrier')
        e(f'ds_read_b128 {KF[0:4]}, {vIR}')
        e(f'ds_read_b128 {KF[4:8]}, {vIR} offset:1024')
        e(f'ds_read_b64 {KF[8:10]}, {vIR} offset:2048')
        for s in range(3):
            for T in range(2):
                P = PP.q(T, 16)
                e(f'{M32} {P}, {KF.q(s)}, {PH.q(T, 12).q(s)}, {P if s else 0}')
        OO = V(88, 16)
        for T in range(2):
            P = PP.q(T, 16)
            O = OO.q(T, 8)
            e(f'v_add_f32 {P[12]}, 0x358637bd, {P[12]}')
            e(f'v_rcp_f32 {P[12]}, {P[12]}')
            for i in range(0, 12, 2):
                e(f'v_pk_mul_f32 {P[i:i+2]}, {P[i:i+2]}, {P[12:14]} op_sel_hi:[1,0]')
                e(f'v_cvt_pk_bf16_f32 {O[i//2]}, {P[i]}, {P[i+1]}')
                if i == 6:
                    e(self.st(O[0:4], vOA, K(T * 2 * XT)[0]))
            e(self.st(O[4:6], vOL, K(T * 2 * XT)[0]))
        self.publish(sF3p, layer + 1)
        self.stamp(f'opub{layer}')

    def acc_init(self, acc, bias, tmp):
        out = []
        if bias:
            out += [f'ds_read_b128 {tmp.q(c)}, {vQ16} offset:{L_B2 + c * 64}' for c in range(5)]
        for i in range(10):
            out.append(f'v_lshlrev_b32 {acc[2*i]}, 16, {RES[i]}')
            out.append(f'v_and_b32 {acc[2*i+1]}, 0xffff0000, {RES[i]}')
        if bias:
            out += [f'v_pk_add_f32 {acc[2*i:2*i+2]}, {acc[2*i:2*i+2]}, {tmp[2*i:2*i+2]}' for i in range(10)]
        return out

    def ring_step(self, u, acc, recv, vWr, vRd, bufstride):
        out = []
        if u:
            out += [f'v_pk_add_f32 {acc[2*i:2*i+2]}, {acc[2*i:2*i+2]}, {recv[2*i:2*i+2]}' for i in range(10)]
        o = (u & 1) * bufstride
        out += [Ins(f'ds_write_b128 {vWr}, {acc.q(c)} offset:{o + c * 1024}', 'rw') for c in range(5)]
        second = [[wait(lgkm='rw'), 's_barrier']]
        second += [f'ds_read_b128 {recv.q(c)}, {vRd} offset:{o + c * 1024}' for c in range(5)]
        return out, second

    def x_finish(self, acc, recv, layer, last, flag_s, tmp):
        e = self.e
        for i in range(10):
            e(f'v_pk_add_f32 {acc[2*i:2*i+2]}, {acc[2*i:2*i+2]}, {recv[2*i:2*i+2]}')
            e(f'v_cvt_pk_bf16_f32 {RES[i]}, {acc[2*i]}, {acc[2*i+1]}')
            if not last:
                if i == 3:
                    e(self.st(RES[0:4], vL16, sXo, 0))
                if i == 7:
                    e(self.st(RES[4:8], vL16, sXo, 1024))
        if last:
            e(f'''v_and_b32 {tmp[0]}, 15, v0
v_mul_u32_u24 {tmp[0]}, 1280, {tmp[0]}
v_add_u32 {tmp[1]}, {tmp[0]}, {vQ16}
v_lshrrev_b32 {tmp[2]}, 1, {vQ16}
v_add_u32 {tmp[0]}, {tmp[0]}, {tmp[2]}''')
            e(self.st(RES[0:4], tmp[1], sOut, 0, '', srd_='s[12:15]'))
            e(self.st(RES[4:8], tmp[1], sOut, 64, '', srd_='s[12:15]'))
            e(self.st(RES[8:10], tmp[0], sOut, 128, '', srd_='s[12:15]'))
            return
        e(self.st(RES[8:10], vX4, sXo, 2048))
        e(f'v_mov_b32 {tmp[2]}, {ONES}')
        for i in range(10):
            e(f'v_dot2_f32_bf16 {tmp[0]}, {RES[i]}, {tmp[2]}, {tmp[0] if i else 0}')
            e(f'v_dot2_f32_bf16 {tmp[1]}, {RES[i]}, {RES[i]}, {tmp[1] if i else 0}')
        e(stat_reduce(tmp[0], tmp[1], tmp[2]))
        e(self.st(tmp[0], vSTs, sSTo, 0))
        self.publish(flag_s, layer + 1)

    def p2(self, layer):
        e = self.e
        ACC, OF, RECV = V(40, 80), V(120, 80), V(200, 20)
        vWr, vRd, TMP = V(220), V(221), V(222, 4)
        acc = lambda u: ACC.q(u, 20)
        e(f'''s_mul_i32 {sT0}, {sW}, 5120
s_add_u32 {sT0}, {sT0}, {L_SCR}
v_add_u32 {vWr}, {sT0}, {vL16}
s_add_u32 {sT1}, {sW}, 1
s_and_b32 {sT1}, {sT1}, 3
s_mul_i32 {sT1}, {sT1}, 5120
s_add_u32 {sT1}, {sT1}, {L_SCR}
v_add_u32 {vRd}, {sT1}, {vL16}''')
        e(self.acc_init(acc(3), False, None))
        for u in range(4):
            e(f's_add_u32 {(sT0, sT1, sT2, sT3)[u]}, {sOl[u]}, 4096')
        e(self.take('p2_pre', layer))
        self.poll(sF3c, 8, layer + 1)
        self.stamp(f'p2_go{layer}')
        lds = []
        for u in range(4):
            for ks in range(5):
                so, off = (sOl[u], ks * 1024) if ks < 4 else ((sT0, sT1, sT2, sT3)[u], 0)
                lds.append(self.ld(OF.q(5 * u + ks), vL16, off, ' sc1', so=so))
        e(lds[:12])
        rest = lds[12:]
        for u in range(4):
            mm = []
            for ks in range(5):
                for c in range(5):
                    a = acc(u).q(c)
                    mm.append(f'{M16} {a}, {W2R.q(5 * ks + c)}, {OF.q(5 * u + ks)}, {a if (ks or u == 3) else 0}')
            if u == 0:
                mm = weave(mm, rest + self.take('p2_r0', layer), 0, 25)
            else:
                f1, f2 = self.ring_step(u - 1, acc(u - 1), RECV, vWr, vRd, 20480)
                mm = weave(mm, f1, 3, 13)
                mm = weave(mm, f2, 17, 21)
                x = self.take(f'p2_r{u}', layer)
                if x:
                    mm = weave(mm, x, 0, 25)
            e(mm)
        self.stamp(f'p2_mm{layer}')
        self.x_finish(acc(3), RECV, layer, False, sF4p, TMP)
        self.stamp(f'p2_pub{layer}')
        e('s_barrier')
        e(self.take('p2_end', layer))

    def p3(self, layer):
        e = self.e
        ACC = V(40, 56)
        WF = V(96, 32)
        CB = V(128, 16)
        OUT = V(144, 8)
        SC = V(152, 8)
        xf = lambda n: V(160, 96).q(n) if n < 24 else A(152, 64).q(n - 24)
        acc = lambda t, T: ACC.q(2 * t + T)
        vX = V(128)
        LB = [V(129), V(130), V(131)]
        e(f'v_add_u32 {vB2}, {sX3}, {vL16}')
        e(f's_add_u32 {sT0}, {sHo}, {HT}\ns_add_u32 {sT1}, {sHoO}, {HT}')
        self.poll(sF4c, 16, layer + 1)
        self.stamp(f'p3_go{layer}')
        xl = [self.ld(xf(2 * ks + T), vB2, T * XT + ks * 1024, ' sc1') for ks in range(20) for T in range(2)]
        NX0 = 14
        e(xl[:NX0])
        for T in range(2):
            e(self.ld(SC.q(T), vL16, T * 1024, ' sc1', so=sST3))
        e('s_barrier')
        e(f'v_add_u32 {vB0}, {L_R0}, {vL16}\nv_add_u32 {vB1}, {L_R0 + 61440}, {vL16}\nv_add_u32 {vFlag}, {L_R0 + 122880}, {vL16}')
        passes = [(0, 1, 2, 3), (4, 5), (6,)]
        wseq = [(t, ks) for ps in passes for ks in range(20) for t in ps]
        NW = 8

        def wread(n):
            t, ks = wseq[n]
            return Ins(f'ds_read_b128 {WF.q(n % NW)}, {(vB0, vB1, vFlag)[t // 3]} offset:{(t % 3) * 20480 + ks * 1024}', f'wf{n}')
        AHEAD = 6
        for n in range(AHEAD):
            e(wread(n))
        mm = []
        for n, (t, ks) in enumerate(wseq):
            g0 = []
            if n % 2 == 0:
                g0.append(wait(lgkm=f'wf{n + 1}'))
            g0.append(f'{M16} {acc(t, 0)}, {WF.q(n % NW)}, {xf(2 * ks)}, {acc(t, 0) if ks else 0}')
            if n + AHEAD == 80:
                g0 += [wait(vm='w1'), 's_barrier']
            if n + AHEAD < len(wseq):
                g0.append(wread(n + AHEAD))
            mm.append(g0)
            mm.append([f'{M16} {acc(t, 1)}, {WF.q(n % NW)}, {xf(2 * ks + 1)}, {acc(t, 1) if ks else 0}'])
        mm = weave(mm, xl[NX0:] + self.take('p3_A', layer), 0, 4 * (40 - NX0))
        st = []
        for T in range(2):
            L = SC.q(T)
            st.append([f'v_pk_add_f32 {L[2:4]}, {L[0:2]}, {L[2:4]}',
                       f'v_add_f32 {L[2]}, {L[2]}, {L[3]}',
                       f'v_mov_b32 {L[3]}, {L[2]}',
                       f'v_permlane16_swap_b32 {L[2]}, {L[3]}',
                       f'v_add_f32 {L[2]}, {L[2]}, {L[3]}',
                       f'v_mov_b32 {L[3]}, {L[2]}',
                       f'v_permlane32_swap_b32 {L[2]}, {L[3]}'] + self.stats_finish(L[2], L[3], L[0], L[1]))
        mm = weave(mm, [x for ab in zip(*st) for x in ab], 110, 150)

        def epi(tiles):
            out = []
            for i, t in enumerate(tiles):
                out.append(f'ds_read_b128 {CB.q(2 * i)}, {vQ16} offset:{L_C1 + t * 64}')
                out.append(f'ds_read_b128 {CB.q(2 * i + 1)}, {vQ16} offset:{L_B1 + t * 64}')
            pre, out = out, []
            for T in range(2):
                sc = SC.q(T)[0:2]
                for i, t in enumerate(tiles):
                    a = acc(t, T)
                    for h in (0, 2):
                        out.append(f'v_pk_fma_f32 {a[h:h+2]}, {sc}, {CB.q(2*i)[h:h+2]}, {a[h:h+2]} op_sel:[1,0,0] op_sel_hi:[1,1,1]')
                    for h in (0, 2):
                        out.append(f'v_pk_fma_f32 {a[h:h+2]}, {a[h:h+2]}, {sc}, {CB.q(2*i+1)[h:h+2]} op_sel_hi:[1,0,1]')
                    for r in range(4):
                        out.append(f'v_max_f32 {a[r]}, 0, {a[r]}')
                    for h in (0, 2):
                        out.append(f'v_pk_mul_f32 {a[h:h+2]}, {a[h:h+2]}, {a[h:h+2]}')
                    for h in (0, 2):
                        out.append(f'v_cvt_pk_bf16_f32 {OUT.q(T)[2*i + h//2]}, {a[h]}, {a[h+1]}')
                if len(tiles) == 2:
                    out.append(self.st(OUT.q(T), vL16, (sHo, sT0)[T], (tiles[0] // 2) * 1024))
                else:
                    out.append(self.st(OUT.q(T)[0:2], vL16, (sHoO, sT1)[T], 0))
            return pre, out
        pre0, e0 = epi((0, 1))
        pre1, e1 = epi((2, 3))
        pre2, e2 = epi((4, 5))
        pre3, e3 = epi((6,))
        mm = weave(mm, pre0, 152, 160)
        mm[163].append('s_barrier')
        mm = weave(mm, e0 + pre1, 164, 200)
        mm = weave(mm, e1 + pre2, 204, 240)
        mm = weave(mm, self.take('p3_B', layer), 164, 240)
        mm = weave(mm, e2 + pre3, 244, 278)
        mm = weave(mm, self.take('p3_C', layer), 240, 280)
        e(mm)
        self.stamp(f'p3_mm{layer}')
        e(e3)
        self.publish(sF5p, layer + 1)
        self.stamp(f'p3_pub{layer}')
        e('s_barrier')
        e(self.take('p3_end', layer))

    def p4(self, layer):
        e = self.e
        ACC, HF, WF, RECV = V(40, 80), V(120, 64), V(184, 40), V(224, 20)
        HA = V(244, 4)
        vWr, vRd, vLA, TMP = V(248), V(249), V(250), V(252, 4)
        acc = lambda u: ACC.q(u, 20)
        for u in range(4):
            e(f'v_add_u32 {HA[u]}, {sHl[u]}, {vL16}')
        e(f'''v_add_u32 {vWr}, {sLB}, {vL16}
v_add_u32 {vLA}, {sLA}, {vL16}
s_add_u32 {sT1}, {sW}, 1
s_and_b32 {sT1}, {sT1}, 3
s_mul_i32 {sT1}, {sT1}, 15360
s_add_u32 {sT1}, {sT1}, {L_R1}
v_add_u32 {vRd}, {sT1}, {vL16}''')
        e(self.acc_init(acc(3), True, RECV))
        self.poll(sF5c, 8, layer + 1)
        self.stamp(f'p4_go{layer}')
        hseq = [(u, s) for s in range(10) for u in range(4)] + [(u, s) for u in range(4) for s in range(10, 14)]
        NH = 16

        def hload(n):
            u, s = hseq[n]
            if s == 0:
                return self.ld(HF.q(n % NH), HA[u], 0, ' sc1', so=sDum)
            return self.ld(HF.q(n % NH), HA[u], s * 1024, ' sc1')
        for n in range(NH):
            e(hload(n))

        def wop(s, c):
            return WF.q((s % 2) * 5 + c) if 3 <= s < 10 else self.w2reg(s, c)

        def wread(s):
            out = []
            if s == 3:
                out.append(wait(vm='w2a'))
            if s == 7:
                out.append(wait(vm='w2b'))
            for c in range(5):
                b, off = (vLA, (s - 3) * 5120) if s < 7 else (vWr, (s - 7) * 5120)
                out.append(f'ds_read_b128 {wop(s, c)}, {b} offset:{off + c * 1024}')
            return [out[:-4]] + out[-4:]
        mm = []
        for n, (u, s) in enumerate(hseq):
            g = []
            for c in range(5):
                a = acc(u).q(c)
                g.append([f'{M16} {a}, {wop(s, c)}, {HF.q(n % NH)}, {a if (s or u == 3) else 0}'])
            if n + NH < len(hseq):
                g[4].append(hload(n + NH))
            mm += g
        for s in range(3, 10):
            mm = weave(mm, wread(s), (s - 1) * 20 + 5, (s - 1) * 20 + 15)
        mm = weave(mm, self.take('p4_A', layer), 0, 60)
        for u in range(3):
            f1, f2 = self.ring_step(u, acc(u), RECV, vWr, vRd, 5120)
            b = 220 + 20 * u
            mm = weave(mm, f1, b + 3, b + 11)
            mm = weave(mm, f2, b + 14, b + 18)
        mm = weave(mm, self.take('p4_tail', layer), 236, 280)
        e(mm)
        self.stamp(f'p4_mm{layer}')
        self.x_finish(acc(3), RECV, layer, layer == 1, sF1p, TMP)
        self.stamp(f'p4_pub{layer}')

    def build(self):
        p = self.p
        self.setup()
        stop = self.o['stop']
        for layer in range(2):
            if layer:
                self.e(self.take('p1_pre', layer))
                self.poll(sF1c, 32, 1)
                self.stamp('p1_poll')
                self.p1_first_loads()
            done = False
            for name, f in (('p1m', self.p1_main), ('p1', self.p1_epilogue), ('p2', self.p2), ('p3', self.p3), ('p4', self.p4)):
                p.comment(f'---- layer {layer} {name}')
                f(layer)
                if stop == (layer, name):
                    done = True
                    break
            if done:
                break
        self.stamp('end')
        self.stamp_flush()
        self.e('s_waitcnt vmcnt(0) lgkmcnt(0)')
        p.label('main_done')
        self.e('s_endpgm')
        return p.finalize()


def gen_main(name, **opt):
    g = Gen(**opt)
    code = g.build()
    if opt.get('stamps'):
        code = '; stamps: ' + ' '.join(g.stamp_names) + '\n' + code
    import sys
    print('main:', g.p.stats, file=sys.stderr)
    return kernel_header(name) + code, kernel_footer(name, vgpr=512, agpr_offset=256, sgpr=102)
```

```python
from asmlib import *
from layout import *

ONES = '0x3f803f80'


def srd(p, s, lo, nbytes):
    p.e(f's_mov_b32 s{s}, s{lo}\ns_mov_b32 s{s+1}, s{lo+1}\ns_mov_b32 s{s+2}, {nbytes}\ns_mov_b32 s{s+3}, 0x20000')


def stat_reduce(a, b, t):
    return [f'v_permlane32_swap_b32 {a}, {b}',
            f'v_add_f32 {a}, {a}, {b}',
            f'v_mov_b32 {t}, {a}',
            f'v_permlane16_swap_b32 {a}, {t}',
            f'v_add_f32 {a}, {a}, {t}']


def wq_colbyte_tables():
    tabs = {}
    for T in range(2):
        for odd in range(2):
            dl = 8 * odd
            base, lbase = (4, 0) if odd else (0, 16)
            ent = []
            for mc in range(8):
                rq, hh = mc >> 1, mc & 1
                if T == 0:
                    if rq < 2:
                        b = 48 + dl + 2 * (8 * hh + 4 * rq)
                    else:
                        b = 96 + dl + 2 * (base + 8 * hh + 4 * (rq - 2))
                else:
                    if rq < 2:
                        b = dl + 2 * (8 * hh + 4 * rq)
                    elif rq == 2:
                        b = (48 if hh == 0 else 0) + dl + 32
                    else:
                        b = 96 + dl + 2 * lbase if hh == 0 else 0
                ent.append(b)
            lo = sum(ent[i] << (8 * i) for i in range(4))
            hi = sum(ent[4 + i] << (8 * i) for i in range(4))
            tabs[T, odd] = (lo, hi)
    return tabs


def gen_prepass(name):
    p = Prog()
    LX, LQ, LU = 0, 12288, 24576
    done = 'pre_done'
    p.e(f's_cmp_ge_u32 s2, 256\ns_cbranch_scc1 {done}')
    p.e('''s_load_dwordx4 s[40:43], s[0:1], 0
s_load_dwordx2 s[44:45], s[0:1], 24
s_load_dwordx2 s[46:47], s[0:1], 40
s_load_dwordx2 s[48:49], s[0:1], 56
s_load_dwordx2 s[50:51], s[0:1], 88''')
    p.e('''s_and_b32 s20, s2, 7
s_lshr_b32 s21, s2, 3
v_lshrrev_b32 v1, 6, v0
v_and_b32 v2, 63, v0
v_readfirstlane_b32 s22, v1
v_lshlrev_b32 v3, 4, v0
v_lshlrev_b32 v4, 4, v2
s_lshl_b32 s23, s22, 10''')
    p.e(wait(lgkm='*'))
    srd(p, 8, 50, WS_BYTES)
    srd(p, 12, 40, 2048 * 1280)
    srd(p, 16, 42, 640 * 3840)
    p.e('''s_lshl_b32 s24, s20, 5
s_add_u32 s24, s24, s21
s_mul_i32 s25, s24, 10240''')
    for i in range(3):
        p.e(f's_add_u32 m0, s23, {LX + i*4096}')
        p.e(f's_add_u32 s26, s25, {i*4096}')
        p.e('buffer_load_dwordx4 v3, s[12:15], s26 offen lds', 'x')
    p.e(f'''s_mul_i32 s26, s20, {80*3840}
s_mul_i32 s27, s21, 40
s_and_b32 s27, s27, 0xfffffff0
s_add_u32 s26, s26, s27
s_mov_b32 s28, {(1 << 32) // 3 + 1}''')
    for i in range(3):
        p.e(f'''v_add_u32 v5, {i*256}, v0
v_mul_hi_u32 v6, v5, s28
v_mul_u32_u24 v7, 3, v6
v_sub_u32 v7, v5, v7
v_mul_u32_u24 v6, 1280, v6
v_lshl_add_u32 v6, v7, 4, v6
s_add_u32 m0, s23, {LQ + i*4096}''')
        p.e('buffer_load_dwordx4 v6, s[16:19], s26 offen lds', 'q')
    p.e('''v_lshrrev_b32 v8, 4, v2
v_bfe_u32 v9, v2, 2, 2
v_and_b32 v10, 3, v2''')
    p.e('s_cmp_ge_u32 s2, 108\ns_cbranch_scc1 pre_w2')
    srd(p, 32, 46, 640 * 3456)
    p.e(f'''s_mul_i32 s26, s2, {(1 << 16) // 27 + 1}
s_lshr_b32 s26, s26, 16
s_mul_i32 s27, s26, 27
s_sub_u32 s27, s2, s27
s_mul_i32 s28, s26, {160*3456}
s_lshl_b32 s29, s27, 7
s_add_u32 s28, s28, s29
v_lshrrev_b32 v5, 3, v0
v_and_b32 v6, 7, v0
v_mul_u32_u24 v5, 3456, v5
v_lshl_add_u32 v5, v6, 4, v5''')
    for i in range(5):
        p.e(f's_add_u32 m0, s23, {LU + i*4096}')
        p.e('buffer_load_dwordx4 v5, s[32:35], s28 offen lds', 'u')
        p.e(f's_add_u32 s28, s28, {32*3456}')
    p.e(f'''v_lshl_add_u32 v11, v8, 3, v9
v_lshlrev_b32 v11, 7, v11
v_lshl_add_u32 v11, v10, 4, v11
s_lshr_b32 s28, s22, 1
s_lshl_b32 s28, s28, 6
s_and_b32 s29, s22, 1
s_lshl_b32 s29, s29, 3
s_add_u32 s28, s28, s29
v_add_u32 v11, s28, v11
s_lshl_b32 s36, s27, 2
s_add_u32 s36, s36, s22
s_mul_i32 s30, s36, 20480
s_mul_i32 s28, s26, 5120
s_add_u32 s30, s30, s28
s_add_u32 s30, s30, {W1P}
s_mul_i32 s37, s26, {108*64}
s_lshl_b32 s36, s36, 6
s_add_u32 s37, s37, s36
s_add_u32 s37, s37, {CS1}''')
    p.e(wait(vm='*'))
    p.e('s_barrier')
    for i in range(5):
        p.e(f'ds_read_b64_tr_b16 v[{20+4*i}:{21+4*i}], v11 offset:{LU + i*4096}')
        p.e(f'ds_read_b64_tr_b16 v[{22+4*i}:{23+4*i}], v11 offset:{LU + i*4096 + 512}')
    p.e(f'v_mov_b32 v12, {ONES}\nv_mov_b32 v13, 0')
    for i in range(20):
        p.e(f'v_dot2_f32_bf16 v13, v{20+i}, v12, v13')
    p.e('''v_mov_b32 v14, v13
v_permlane32_swap_b32 v13, v14
v_add_f32 v13, v13, v14
v_mov_b32 v14, v13
v_permlane16_swap_b32 v13, v14
v_add_f32 v13, v13, v14
v_and_b32 v14, 15, v2
v_lshlrev_b32 v14, 2, v14''')
    p.e('buffer_store_dword v13, v14, s[8:11], s37 offen')
    p.e(wait(vm='*', lgkm='*'))
    p.e('s_branch pre_ustore')
    p.label('pre_w2')
    p.items.append(Pseudo('drained'))
    p.e(f'''s_cmp_ge_u32 s2, 216
s_cselect_b32 s32, s44, s48
s_cselect_b32 s33, s45, s49
s_cselect_b32 s34, {640*1280}, {1728*1280 - 0}
s_mov_b32 s35, 0x20000
s_cselect_b32 s26, 216, 108
s_cselect_b32 s30, {WO}, {W2P}
s_cselect_b32 s36, {20*5120}, {54*5120}'''.replace(f's_cselect_b32 s34, {640*1280}, {1728*1280}', f's_mov_b32 s34, {640*1280}\ns_cselect_b32 s34, s34, {1728*1280}')
        .replace('s_cselect_b32 s26, 216, 108', 's_mov_b32 s26, 216\ns_cselect_b32 s26, s26, 108')
        .replace(f's_cselect_b32 s30, {WO}, {W2P}', f's_mov_b32 s30, {WO}\ns_cselect_b32 s30, s30, {W2P}')
        .replace(f's_cselect_b32 s36, {20*5120}, {54*5120}', f's_mov_b32 s36, {20*5120}\ns_cselect_b32 s36, s36, {54*5120}'))
    p.e(f'''s_sub_u32 s26, s2, s26
s_and_b32 s27, s26, 1
s_lshr_b32 s26, s26, 1
s_mul_i32 s28, s26, {32*1280}
s_mul_i32 s29, s27, 640
s_add_u32 s28, s28, s29
s_mov_b32 s29, {(1 << 32) // 40 + 1}''')
    for i in range(5):
        p.e(f'''v_add_u32 v5, {i*256}, v0
v_mul_hi_u32 v6, v5, s29
v_mul_u32_u24 v6, 640, v6
v_lshl_add_u32 v6, v5, 4, v6
s_add_u32 m0, s23, {LU + i*4096}''')
        p.e('buffer_load_dwordx4 v6, s[32:35], s28 offen lds', 'u')
    p.e(f'''v_lshl_add_u32 v11, v8, 3, v9
v_mul_u32_u24 v11, 640, v11
s_mul_i32 s28, s22, 160
v_add_u32 v11, s28, v11
v_lshl_add_u32 v12, v10, 3, v11
v_lshl_add_u32 v11, v10, 4, v11
s_lshl_b32 s28, s27, 2
s_add_u32 s28, s28, s22
s_mul_i32 s28, s28, s36
s_add_u32 s30, s30, s28
s_mul_i32 s28, s26, 5120
s_add_u32 s30, s30, s28''')
    p.e('s_waitcnt vmcnt(0)')
    p.e('s_barrier')
    for t in range(5):
        a, o = ('v11', (t >> 1) * 64 + (t & 1) * 8) if t < 4 else ('v12', 128)
        p.e(f'ds_read_b64_tr_b16 v[{20+4*t}:{21+4*t}], {a} offset:{LU + o}')
        p.e(f'ds_read_b64_tr_b16 v[{22+4*t}:{23+4*t}], {a} offset:{LU + o + 4*640}')
    p.e(wait(vm='*', lgkm='*'))
    p.label('pre_ustore')
    p.e('s_add_u32 s31, s30, 4096')
    for i in range(5):
        so, o = ('s30', i * 1024) if i < 4 else ('s31', 0)
        p.e(f'buffer_store_dwordx4 v[{20+4*i}:{23+4*i}], v4, s[8:11], {so} offen offset:{o}')
    p.e(f'''v_and_b32 v5, 7, v0
v_lshrrev_b32 v6, 3, v0
v_mul_u32_u24 v7, 1280, v5
v_lshl_add_u32 v7, v6, 4, v7''')
    for i in range(3):
        p.e(f'ds_read_b128 v[{44+4*i}:{47+4*i}], v7 offset:{LX + i*512}')
    p.e(f'''s_lshr_b32 s26, s24, 1
s_and_b32 s27, s24, 1
s_lshl_b32 s27, s27, 7
s_mul_i32 s28, s26, {XT}
s_add_u32 s28, s28, s27
s_add_u32 s28, s28, {XA}
s_add_u32 s29, s28, 8192
s_add_u32 s36, s28, 16384
s_cmp_ge_u32 s22, 2
s_cselect_b32 s36, {OOB}, s36
s_cselect_b32 s37, 0, -1
v_lshlrev_b32 v12, 8, v6
v_lshl_add_u32 v12, v5, 4, v12''')
    for i, so in enumerate(('s28', 's29', 's36')):
        p.e(f'buffer_store_dwordx4 v[{44+4*i}:{47+4*i}], v12, s[8:11], {so} offen')
    for i in range(4):
        p.e(f'v_and_b32 v{56+i}, s37, v{52+i}')
    p.e(f'v_mov_b32 v13, {ONES}\nv_mov_b32 v14, 0\nv_mov_b32 v15, 0')
    for r in list(range(44, 52)) + list(range(56, 60)):
        p.e(f'v_dot2_f32_bf16 v14, v{r}, v13, v14')
        p.e(f'v_dot2_f32_bf16 v15, v{r}, v{r}, v15')
    p.e(stat_reduce('v14', 'v15', 'v16'))
    p.e(f'''v_lshrrev_b32 v16, 5, v2
v_lshlrev_b32 v16, 9, v16
v_lshl_add_u32 v16, v5, 4, v16
v_bfe_u32 v17, v2, 3, 1
v_lshl_add_u32 v16, v17, 2, v16
s_lshl_b32 s28, s26, 10
s_add_u32 s28, s28, s27
s_lshr_b32 s29, s22, 1
s_lshl_b32 s29, s29, 8
s_add_u32 s28, s28, s29
s_and_b32 s29, s22, 1
s_lshl_b32 s29, s29, 3
s_add_u32 s28, s28, s29
s_add_u32 s28, s28, {ST}''')
    p.e('buffer_store_dword v14, v16, s[8:11], s28 offen')
    tabs = wq_colbyte_tables()
    p.e(f'''s_and_b32 s26, s22, 1
s_and_b32 s27, s21, 1
s_cmp_eq_u32 s27, 1
s_mov_b32 s28, {tabs[0,1][0]}
s_cselect_b32 s28, s28, {tabs[0,0][0]}
s_mov_b32 s29, {tabs[0,1][1]}
s_cselect_b32 s29, s29, {tabs[0,0][1]}
s_mov_b32 s30, {tabs[1,1][0]}
s_cselect_b32 s30, s30, {tabs[1,0][0]}
s_mov_b32 s31, {tabs[1,1][1]}
s_cselect_b32 s31, s31, {tabs[1,0][1]}
s_cmp_eq_u32 s26, 1
s_cselect_b32 s28, s30, s28
s_cselect_b32 s29, s31, s29
s_cselect_b32 s38, 28, 32
v_mov_b32 v5, s28
v_mov_b32 v6, s29
v_and_b32 v7, 1, v8
v_cmp_eq_u32 vcc, 1, v7
v_cndmask_b32 v5, v5, v6, vcc
v_lshlrev_b32 v6, 3, v10
v_bfe_u32 v5, v5, v6, 8
v_lshrrev_b32 v6, 1, v8
v_lshl_add_u32 v6, v6, 3, v9
v_mul_u32_u24 v6, 144, v6
v_add_u32 v5, v5, v6
s_lshr_b32 s27, s22, 1
s_mul_i32 s28, s27, {48*144}
v_add_u32 v5, s28, v5''')
    for i in range(3):
        p.e(f'ds_read_b64_tr_b16 v[{60+4*i}:{61+4*i}], v5 offset:{LQ + i*16*144}')
        p.e(f'ds_read_b64_tr_b16 v[{62+4*i}:{63+4*i}], v5 offset:{LQ + i*16*144 + 4*144}')
    p.e(f'''v_and_b32 v6, 31, v2
v_cmp_gt_u32 vcc, s38, v6
s_mul_i32 s28, s21, 81920
s_mul_i32 s29, s20, 10240
s_add_u32 s28, s28, s29
s_mul_i32 s29, s27, 6144
s_add_u32 s28, s28, s29
s_lshl_b32 s29, s26, 10
s_add_u32 s28, s28, s29
s_add_u32 s28, s28, {WQ}
s_add_u32 s29, s28, 4096
s_cmp_eq_u32 s27, 1
s_cselect_b32 s29, {OOB}, s29''')
    for r in range(60, 72):
        p.e(f'v_cndmask_b32 v{r}, 0, v{r}, vcc')
    for r in range(68, 72):
        p.e(f'v_and_b32 v{r}, s37, v{r}')
    for i, (so, o) in enumerate((('s28', 0), ('s28', 2048), ('s29', 0))):
        p.e(f'buffer_store_dwordx4 v[{60+4*i}:{63+4*i}], v4, s[8:11], {so} offen offset:{o}')
    p.e('v_mov_b32 v14, 0')
    for r in range(60, 72):
        p.e(f'v_dot2_f32_bf16 v14, v{r}, v13, v14')
    p.e(f'''v_mov_b32 v15, v14
v_permlane32_swap_b32 v14, v15
v_add_f32 v14, v14, v15
v_lshlrev_b32 v6, 2, v6
s_lshl_b32 s28, s21, 12
s_lshl_b32 s29, s20, 9
s_add_u32 s28, s28, s29
s_lshl_b32 s29, s22, 7
s_add_u32 s28, s28, s29
s_add_u32 s28, s28, {CSQ}''')
    p.e('buffer_store_dword v14, v6, s[8:11], s28 offen')
    p.e(f'''v_mov_b32 v72, -1
v_mov_b32 v73, -1
v_mov_b32 v74, -1
v_mov_b32 v75, -1
v_mov_b32 v76, 0
s_lshl_b32 s28, s2, 12
s_add_u32 s28, s28, {KV}
s_lshl_b32 s29, s2, 8
s_add_u32 s29, s29, {FL}
v_lshlrev_b32 v77, 2, v2''')
    p.e('buffer_store_dwordx4 v[72:75], v3, s[8:11], s28 offen')
    p.e('buffer_store_dword v76, v77, s[8:11], s29 offen')
    p.label(done)
    p.e('s_endpgm')
    return kernel_header(name) + p.finalize(), kernel_footer(name, vgpr=80, agpr_offset=80, sgpr=64)
```

```python
import sys
sys.path.insert(0, 'gen')
from prepass import gen_prepass
NAME = 'interleave_layers__linear_kernel_hedgehog__dense_activation_squared_relu__prompt'
def build(out, **opt):
    pre_code, pre_foot = gen_prepass('pre_kernel')
    hdr = '; @launch kernel=pre_kernel grid=(256,1,1) block=(256,1,1) lds=45056\n'
    code, foot = pre_code, pre_foot
    if not opt.get('pre_only'):
        from mainker import gen_main
        mc, mf = gen_main('main_kernel', **opt)
        hdr += '; @launch kernel=main_kernel grid=(256,1,1) block=(256,1,1) lds=163840\n'
        code += mc; foot += mf
    open(out, 'w').write(hdr + '.amdgcn_target "amdgcn-amd-amdhsa--gfx950"\n' + code + foot)
if __name__ == '__main__':
    opt = {}
    for a in sys.argv[2:]:
        k, v = a.split('=')
        opt[k] = eval(v)
    build(sys.argv[1], **opt)
```

```python
import re

REG_RE = re.compile(r'(?<![\w.])([vas])(?:\[(\d+):(\d+)\]|(\d+))(?![\w])')
TRANS = ('v_exp_f32', 'v_log_f32', 'v_rcp_f32', 'v_rsq_f32', 'v_sqrt_f32', 'v_sin_f32', 'v_cos_f32')


def regs_of(tok):
    tok = tok.strip()
    out = []
    for m in REG_RE.finditer(tok):
        k = m.group(1)
        if m.group(2) is not None:
            out += [(k, i) for i in range(int(m.group(2)), int(m.group(3)) + 1)]
        else:
            out.append((k, int(m.group(4))))
    for name in ('vcc', 'exec', 'm0'):
        if re.search(r'(?<![\w])' + name + r'(?:_lo|_hi)?(?![\w])', tok):
            out.append((name, 0))
    return out


def split_ops(s):
    ops, depth, cur = [], 0, ''
    for ch in s:
        if ch in '[(':
            depth += 1
        elif ch in '])':
            depth -= 1
        if ch == ',' and depth == 0:
            ops.append(cur.strip())
            cur = ''
        else:
            cur += ch
    if cur.strip():
        ops.append(cur.strip())
    return ops


class Ins:
    __slots__ = ('text', 'op', 'defs', 'uses', 'kind', 'tag', 'ab', 'c', 'passes', 'data', 'extra', 'val')

    def __init__(self, text, tag=None, val=None, expect=None):
        self.text = text.strip().replace(' offset:0 ', ' ')
        if self.text.endswith(' offset:0'):
            self.text = self.text[:-9]
        self.tag = tag
        self.val = val
        self.extra = expect
        parts = self.text.split(None, 1)
        self.op = op = parts[0]
        ops = split_ops(parts[1]) if len(parts) > 1 else []
        if ops:
            last = ops[-1]
            cut = re.search(r'\s+(op_sel|op_sel_hi|neg_lo|neg_hi|offset|offset0|offset1|offen|lds|sc0|sc1|nt|glc|clamp|row_|quad_perm|bound_ctrl|bank_mask|cbsz|abid|blgp|src0_sel|src1_sel|dst_sel|dst_unused)', last)
            if cut:
                ops[-1] = last[:cut.start()]
        R = [regs_of(o) for o in ops]
        flat = lambda L: set(r for x in L for r in x)
        self.ab = set()
        self.c = set()
        self.passes = 0
        self.data = set()
        is_lds = bool(re.search(r'\slds(\s|$)', self.text))
        if op.startswith('v_mfma'):
            self.kind = 'mfma'
            self.defs = flat(R[:1])
            self.ab = flat(R[1:3])
            self.c = flat(R[3:4])
            self.uses = self.ab | self.c
            self.passes = 8 if '32x32' in op else 4
        elif op.startswith('buffer_load') and is_lds:
            self.kind = 'dma'
            self.defs = set()
            self.uses = flat(R) | {('m0', 0)}
        elif op.startswith('buffer_load') or op.startswith('global_load'):
            self.kind = 'vload'
            self.defs = flat(R[:1])
            self.uses = flat(R[1:])
            if 'd16' in op:
                self.uses |= self.defs
        elif op.startswith('buffer_store'):
            self.kind = 'vstore'
            self.defs = set()
            self.uses = flat(R)
            self.data = flat(R[:1])
        elif op.startswith('buffer_atomic'):
            self.kind = 'vstore'
            self.defs = set()
            self.uses = flat(R)
            self.data = flat(R[:1])
            assert ' sc0' not in self.text
        elif op in ('buffer_wbl2', 'buffer_inv'):
            self.kind = 'vstore'
            self.defs = set()
            self.uses = set()
        elif op.startswith('ds_read') or op.startswith('ds_bpermute') or op.startswith('ds_permute') or op.startswith('ds_swizzle'):
            self.kind = 'dsread'
            self.defs = flat(R[:1])
            self.uses = flat(R[1:])
        elif op.startswith('ds_'):
            self.kind = 'dswrite'
            self.defs = set()
            self.uses = flat(R)
        elif op.startswith('s_load') or op.startswith('s_memtime') or op.startswith('s_memrealtime') or op.startswith('s_atomic'):
            self.kind = 'smem'
            self.defs = flat(R[:1])
            self.uses = flat(R[1:])
            if op.startswith('s_atomic'):
                self.uses |= self.defs
        elif op.startswith('v_'):
            self.kind = 'valu'
            assert not (op.startswith('v_pk_') and re.search(r'op_sel:\[[01],1', self.text)), self.text
            if op.startswith('v_permlane') or op.startswith('v_swap'):
                self.defs = flat(R[:2])
                self.uses = flat(R[:2])
            elif op.startswith('v_fmac') or op.startswith('v_dot2c') or op.startswith('v_pk_fmac'):
                self.defs = flat(R[:1])
                self.uses = flat(R)
            elif op == 'v_nop':
                self.defs = set()
                self.uses = set()
            else:
                self.defs = flat(R[:1])
                self.uses = flat(R[1:])
                assert '_co_' not in op and not op.startswith('v_cmpx'), op
        elif op in ('s_waitcnt', 's_nop', 's_barrier', 's_endpgm', 's_setprio', 's_sleep', 's_branch') or op.startswith('s_cbranch'):
            self.kind = 'ctl'
            self.defs = set()
            self.uses = set()
            if 'vcc' in op:
                self.uses = {('vcc', 0)}
        elif op.startswith('s_cmp') or op.startswith('s_bitcmp'):
            self.kind = 'salu'
            self.defs = set()
            self.uses = flat(R)
        elif op.startswith('s_'):
            self.kind = 'salu'
            self.defs = flat(R[:1])
            self.uses = flat(R[1:])
            if op in ('s_addk_i32', 's_mulk_i32', 's_cmov_b32'):
                self.uses |= self.defs
            if 'saveexec' in op:
                self.defs |= {('exec', 0)}
        else:
            raise ValueError('unknown op: ' + text)

    def states(self):
        if self.op == 's_nop':
            return int(self.text.split()[1], 0) + 1
        return 1


class Pseudo:
    def __init__(self, kind, arg=None):
        self.kind = kind
        self.arg = arg


def ins(x, tag=None):
    if isinstance(x, (Ins, Pseudo)):
        return x
    return Ins(x, tag)


def is_vreg(r):
    return r[0] in 'va' and len(r[0]) == 1


def need_states(p, c):
    n = 0
    pv = p.kind == 'valu'
    if pv:
        pdv = set(r for r in p.defs if is_vreg(r))
        pds = set(r for r in p.defs if not is_vreg(r))
        if pdv:
            if c.kind == 'mfma' and pdv & c.uses:
                n = max(n, 3 if p.op.startswith('v_dot') else 2)
            if c.kind == 'valu':
                if c.op.startswith('v_permlane') and pdv & c.uses:
                    n = max(n, 2)
                if ('row_' in c.text or 'quad_perm' in c.text) and pdv & c.uses:
                    n = max(n, 2)
                if (c.op.startswith('v_readfirstlane') or c.op.startswith('v_readlane')) and pdv & c.uses:
                    n = max(n, 1)
                if p.op in TRANS and pdv & c.uses:
                    n = max(n, 1)
                if ('op_sel' in p.text and not p.op.startswith('v_pk_')) or 'dst_sel' in p.text:
                    if pdv & (c.uses | c.defs):
                        n = max(n, 1)
            if p.op.startswith('v_dot'):
                if c.op == p.op:
                    ops = split_ops(c.text.split(None, 1)[1])
                    ab = set(regs_of(ops[1])) | set(regs_of(ops[2]))
                    if pdv & ab:
                        n = max(n, 3)
                elif pdv & (c.uses | c.defs):
                    n = max(n, 3)
        if pds:
            if c.kind in ('vload', 'vstore', 'dma') and pds & c.uses:
                n = max(n, 5)
            if c.kind == 'valu' and pds & c.uses:
                n = max(n, 4 if c.op.startswith('v_readlane') or c.op.startswith('v_writelane') else 2)
            if c.kind in ('salu', 'smem') and pds & c.uses:
                n = max(n, 1)
    elif p.kind == 'mfma':
        big = 12 if p.passes == 8 else 8
        if c.kind == 'mfma':
            if p.defs & c.ab:
                n = max(n, big)
            if p.defs & c.c and not (p.defs == c.c and p.passes == c.passes):
                n = max(n, big - 2)
            if p.defs & c.defs and not (p.defs & c.c):
                n = max(n, big - 2)
        elif c.kind in ('valu', 'vload', 'vstore', 'dma', 'dsread', 'dswrite'):
            if p.defs & (c.uses | c.defs):
                n = max(n, big)
            if p.c & c.defs:
                n = max(n, 7 if p.passes == 8 else 3)
    elif p.kind == 'vstore':
        if len(p.data) >= 3 and p.data & c.defs:
            n = max(n, 2)
    elif p.kind == 'salu':
        if ('m0', 0) in p.defs and c.kind == 'dma':
            n = max(n, 1)
    return n


class Prog:
    def __init__(self, prefix=''):
        self.items = []
        self.nlabel = 0
        self.prefix = prefix

    def e(self, x, tag=None):
        if isinstance(x, (list, tuple)):
            for y in x:
                self.e(y, tag)
            return
        if isinstance(x, str) and '\n' in x:
            for y in x.split('\n'):
                if y.strip():
                    self.e(y, tag)
            return
        self.items.append(ins(x, tag))

    def newlabel(self, base='L'):
        self.nlabel += 1
        return f'{self.prefix}{base}_{self.nlabel}'

    def label(self, name):
        self.items.append(Pseudo('label', name))

    def comment(self, t):
        self.items.append(Pseudo('comment', t))

    def finalize(self, vals=None):
        vals = {} if vals is None else dict(vals)
        self.vals = vals
        out = []
        hist = []
        vq = []
        lq = []
        skips = {}
        stats = {'nop': 0, 'wait': 0, 'n': 0}

        def push(i):
            out.append(i)
            hist.append(i)
            stats['n'] += 1
            if len(hist) > 24:
                del hist[0]

        def do_wait(nv, nl):
            nonlocal vq, lq
            parts = []
            if nv is not None:
                nv = min(nv, 63)
                parts.append(f'vmcnt({nv})')
                vq = vq[len(vq) - nv:] if nv else []
            if nl is not None:
                if any(x.kind == 'smem' for x in lq):
                    nl = 0
                nl = min(nl, 15)
                parts.append(f'lgkmcnt({nl})')
                lq = lq[len(lq) - nl:] if nl else []
            if parts and not hoist(nv, nl):
                push(Ins('s_waitcnt ' + ' '.join(parts)))
                stats['wait'] += 1

        def hoist(nv, nl):
            k = len(out) - 1
            dv = dl = 0
            while k >= 0 and len(out) - k <= 6:
                x = out[k]
                if not isinstance(x, Ins) or (x.kind == 'ctl' and x.op not in ('s_nop', 's_waitcnt')) or x.kind == 'smem':
                    return False
                if x.kind == 'mfma':
                    break
                if x.kind in ('vload', 'vstore', 'dma'):
                    dv += 1
                if x.kind in ('dsread', 'dswrite'):
                    dl += 1
                k -= 1
            else:
                return False
            if k == len(out) - 1:
                return False
            if nv is not None:
                nv -= dv
                if nv < 0:
                    return False
            if nl is not None:
                nl -= dl
                if nl < 0:
                    return False
            nxt = out[k + 1]
            if nxt.op == 's_waitcnt':
                m = re.search(r'vmcnt\((\d+)\)', nxt.text)
                if m:
                    nv = int(m.group(1)) if nv is None else min(nv, int(m.group(1)))
                m = re.search(r'lgkmcnt\((\d+)\)', nxt.text)
                if m:
                    nl = int(m.group(1)) if nl is None else min(nl, int(m.group(1)))
            txt = 's_waitcnt' + (f' vmcnt({nv})' if nv is not None else '') + (f' lgkmcnt({nl})' if nl is not None else '')
            if nxt.op == 's_waitcnt':
                nxt.text = txt
            else:
                w = Ins(txt)
                out.insert(k + 1, w)
                hist.insert(hist.index(nxt), w)
                stats['n'] += 1
                stats['wait'] += 1
            return True

        def last_match(q, pred):
            for k in range(len(q) - 1, -1, -1):
                if pred(q[k]):
                    return len(q) - 1 - k
            return None

        for it in self.items:
            if isinstance(it, Pseudo):
                if it.kind == 'label':
                    out.append(it.arg + ':')
                elif it.kind == 'comment':
                    out.append('; ' + it.arg)
                elif it.kind == 'wait':
                    tv, tl = it.arg
                    nv = nl = None
                    if tv is not None:
                        nv = last_match(vq, (lambda x: True) if tv == '*' else (lambda x: x.tag in tv))
                    if tl is not None:
                        nl = last_match(lq, (lambda x: True) if tl == '*' else (lambda x: x.tag in tl))
                    do_wait(nv, nl)
                elif it.kind == 'skip_begin':
                    skips[it.arg] = (list(vq), list(lq), list(hist))
                elif it.kind == 'skip_end':
                    v0, l0, h0 = skips.pop(it.arg)
                    assert v0[len(v0) - len(vq):] == vq or not vq, 'vm queue not a suffix at ' + it.arg
                    assert l0[len(l0) - len(lq):] == lq or not lq, 'lgkm queue not a suffix at ' + it.arg
                    vq, lq = v0, l0
                    out.append(it.arg + ':')
                    d = 0
                    for p in reversed(h0):
                        assert not (p.kind == 'mfma' and d < 12), 'mfma too close to skip ' + it.arg
                        d += p.states()
                    push(Ins('s_nop 1'))
                elif it.kind == 'drained':
                    vq, lq = [], []
                elif it.kind == 'dropvm':
                    vq = vq[:len(vq) - it.arg]
                elif it.kind == 'assert_empty':
                    assert not vq and not lq, 'queues not empty at ' + str(it.arg)
                else:
                    raise ValueError(it.kind)
                continue
            i = it
            if i.op == 's_waitcnt':
                m = re.search(r'vmcnt\((\d+)\)', i.text)
                if m:
                    n = int(m.group(1))
                    vq = vq[max(0, len(vq) - n):] if n else []
                m = re.search(r'lgkmcnt\((\d+)\)', i.text)
                if m:
                    n = int(m.group(1))
                    assert n == 0 or not any(x.kind == 'smem' for x in lq)
                    lq = lq[max(0, len(lq) - n):] if n else []
                push(i)
                continue
            for rr, name in (i.extra or []):
                for r in regs_of(str(rr)):
                    assert vals.get(r) == name, f'{i.text}: {r} holds {vals.get(r)}, expected {name}'
            for r in i.defs:
                vals[r] = i.val
            touch = i.uses | i.defs
            if i.kind == 'vload' and 'd16' in i.op:
                nv = last_match(vq, lambda x: x.defs & (touch - i.defs) or (x.defs & touch and 'd16' not in x.op))
            else:
                nv = last_match(vq, lambda x: x.defs & touch)
            nl = last_match(lq, lambda x: x.defs & touch)
            do_wait(nv, nl)
            need, d = 0, 0
            for p in reversed(hist):
                need = max(need, need_states(p, i) - d)
                d += p.states()
                if d >= 20:
                    break
            if need > 0:
                push(Ins(f's_nop {need - 1}'))
                stats['nop'] += need
            push(i)
            if i.kind in ('vload', 'vstore', 'dma'):
                vq.append(i)
            elif i.kind in ('dsread', 'dswrite', 'smem'):
                lq.append(i)
        self.stats = stats
        return '\n'.join((' ' + x.text) if isinstance(x, Ins) else x for x in out) + '\n'


def wait(vm=None, lgkm=None):
    f = lambda t: None if t is None else ('*' if t == '*' else (set(t) if isinstance(t, (list, tuple, set)) else {t}))
    return Pseudo('wait', (f(vm), f(lgkm)))


def weave(main, fill, start=0, end=None, per=None):
    main = [list(x) if isinstance(x, (list, tuple)) else [x] for x in main]
    if end is None:
        end = len(main)
    n = end - start
    k = 0
    for m in range(n):
        if per is not None:
            lim = min(len(fill), int((m + 1) * per + 1e-9))
        else:
            lim = ((m + 1) * len(fill) + n - 1) // n
        while k < lim:
            f = fill[k]
            main[start + m] += list(f) if isinstance(f, (list, tuple)) else [f]
            k += 1
    while k < len(fill):
        f = fill[k]
        main[end - 1] += list(f) if isinstance(f, (list, tuple)) else [f]
        k += 1
    return main


def vr(k, base, n=1):
    return f'{k}{base}' if n == 1 else f'{k}[{base}:{base + n - 1}]'


class R:
    def __init__(self, k, base, n):
        self.k, self.base, self.n = k, base, n

    def __getitem__(self, i):
        if isinstance(i, slice):
            a = i.start or 0
            b = self.n if i.stop is None else i.stop
            assert 0 <= a < b <= self.n, (a, b, self.n)
            return R(self.k, self.base + a, b - a)
        assert 0 <= i < self.n, (i, self.n)
        return R(self.k, self.base + i, 1)

    def q(self, i, n=4):
        return self[i * n:(i + 1) * n]

    def __str__(self):
        return vr(self.k, self.base, self.n)

    __repr__ = __str__

    def __format__(self, spec):
        return str(self)


def kernel_footer(name, vgpr=512, agpr_offset=256, sgpr=102):
    return f'''.section .rodata,"a"
.p2align 6
.amdhsa_kernel {name}
  .amdhsa_next_free_vgpr {vgpr}
  .amdhsa_next_free_sgpr {sgpr}
  .amdhsa_accum_offset {agpr_offset}
  .amdhsa_group_segment_fixed_size 0
  .amdhsa_kernarg_size 96
  .amdhsa_user_sgpr_count 2
  .amdhsa_user_sgpr_kernarg_segment_ptr 1
  .amdhsa_system_sgpr_workgroup_id_x 1
  .amdhsa_float_denorm_mode_32 3
.end_amdhsa_kernel
'''


def kernel_header(name):
    return f'''.text
.globl {name}
.p2align 8
.type {name},@function
{name}:
'''
```

```python
import sys
from asmlib import *
from layout import *
from prepass import stat_reduce, wq_colbyte_tables, ONES

V = lambda b, n=1: R('v', b, n)
A = lambda b, n=1: R('a', b, n)
S = lambda b, n=1: R('s', b, n)
WSR = 's[8:11]'
M16 = 'v_mfma_f32_16x16x32_bf16'
M32 = 'v_mfma_f32_32x32x16_bf16'
PS = 4224
IMG = L_SCR + 8 * PS
LOG2E = '0x3fb8aa3b'
SPIN_LIMIT = 1 << 19

sEp, sMode = S(3), S(87)
sG, sJ, sW, sTB, sCS, sTH, sFS = (S(i) for i in range(20, 27))
sW1K, sW4K, sSpin, sT0, sT1, sT2, sT3 = (S(i) for i in range(27, 34))
sWQ, sW1, sW1O, sW2, sDum, sXo, sSTo, sHo, sHoO, sKVp = (S(i) for i in range(34, 44))
sF1p, sF1c, sF3p, sF3c, sF4p, sF4c, sF5p, sF5c = (S(i) for i in range(44, 52))
sOl = S(52, 4)
sHl = S(56, 4)
sX3, sST3, sWO, sOut = (S(i) for i in range(60, 64))
KBASE = 64
sW1B = S(64)
sLA, sLB, sHoB, sD0, sD1 = (S(i) for i in range(82, 87))
sTSa = S(88, 2)
sTSb = S(90, 2)
sFA, sFB = S(100), S(101)


def K(off):
    i, o = divmod(off, 4096)
    assert i <= 17
    return ('0' if i == 0 else f's{KBASE + i}'), o


vL16, vT16, vW4, vXP1, vSP1, vOA, vOL, vX4, vSTs, vHH16, vQ16 = (V(i) for i in range(1, 12))
vPW, vVW, vBW, vTA, vTB0, vTB1, vKVp, vKVg, vIW, vIR, vL4 = (V(i) for i in range(12, 23))
vOne, vTS, vB0, vB1, vFlag = (V(i) for i in range(23, 28))
RES = V(28, 10)
vB2, vB3 = V(38), V(39)
WOR = A(0, 100)
X1A = A(100, 64)
WPH = A(164, 12)
STASH = A(176, 80)


def lagzip(a, b, lag):
    out = list(a[:lag])
    a = a[lag:]
    for i in range(max(len(a), len(b))):
        out += b[i:i + 1] + a[i:i + 1]
    return out


def cvt(d, s):
    return [f'v_cvt_pk_bf16_f32 {d[i]}, {s[2*i]}, {s[2*i+1]}' for i in range(d.n)]


def lines(t):
    return [x for x in t.split('\n') if x.strip()]


DEFAULT_SCHED = {
    'p1_tail': [('WO', 0, 5)],
    'kepi': [('W1E', 0, 3), ('TOUCH', 0, 1)],
    'qepi': [('W1A', 0, 5)],
    'p2_r3': [('W2R', 0, 5)],
    'p2_end': [('W1L', 0, 3)],
    'p3_B': [('W2A', 0, 5)],
    'p3_end': [('W2B', 0, 4), ('W2X', 0, 2)],
}


class Base:
    def __init__(self, **opt):
        self.o = dict(stamps=0, stop=None, xdepth=8, sched=None, stash=1, lag=14, force=None)
        self.o.update(opt)
        self.nstamp = 0
        self.stamp_names = []
        self.sc = ''
        sc = self.o['sched'] or DEFAULT_SCHED
        self.sched = sc if isinstance(sc, (list, tuple)) else (sc, sc)
        self.ool = []

    def e(self, x, tag=None):
        self.p.e(x, tag)

    def srd(self, s, lo, nbytes):
        if lo != s:
            self.e(f's_mov_b32 s{s}, s{lo}\ns_mov_b32 s{s+1}, s{lo+1}')
        self.e(f's_mov_b32 s{s+2}, {nbytes}\ns_mov_b32 s{s+3}, 0x20000')

    def stamp_ins(self, name):
        if not self.o['stamps']:
            return []
        i = self.nstamp
        assert i < 64
        cur, prev = (sTSa, sTSb) if i & 1 == 0 else (sTSb, sTSa)
        out = []
        if i:
            out.append(f'v_writelane_b32 {vTS}, {prev[0]}, {i - 1}')
        out.append(f's_mem{"real" if name.startswith("RT") else ""}time {cur}')
        self.stamp_names.append(name)
        self.nstamp += 1
        return out

    def stamp(self, name):
        self.e(self.stamp_ins(name))

    def fine(self, mm, ph, layer, idx):
        if self.o['stamps'] == 2 + (1 - layer):
            for i in idx:
                mm[i] = list(mm[i]) + self.stamp_ins(f'{ph}@{i}')
        return mm

    def stamp_flush(self):
        if not self.o['stamps']:
            return
        i = self.nstamp
        prev = sTSb if i & 1 == 0 else sTSa
        self.e(f'v_writelane_b32 {vTS}, {prev[0]}, {i - 1}')
        self.e(f'''s_lshl_b32 {sT0}, s2, 10
s_lshl_b32 {sT1}, {sW}, 8
s_add_u32 {sT0}, {sT0}, {sT1}
s_add_u32 {sT0}, {sT0}, {TS}''')
        self.e(f'buffer_store_dword {vTS}, {vL4}, {WSR}, {sT0} offen')

    def ld(self, dst, vaddr, off, fl='', so=None, tag=None, val=None):
        op = {1: 'dword', 2: 'dwordx2', 4: 'dwordx4'}[dst.n]
        if so is None:
            so, o = K(off)
        else:
            o = off
        assert 0 <= o < 4096
        return Ins(f'buffer_load_{op} {dst}, {vaddr}, {WSR}, {so} offen offset:{o}{fl}', tag, val)

    def st(self, src, vaddr, so, off=0, fl=None, tag='st', srd_=WSR):
        op = {1: 'dword', 2: 'dwordx2', 4: 'dwordx4'}[src.n]
        if fl is None:
            fl = self.sc
        assert 0 <= off < 4096
        return Ins(f'buffer_store_{op} {src}, {vaddr}, {srd_}, {so} offen offset:{off}{fl}', tag)

    def dma(self, smbase, lds_off, vaddr, sg, g_off, n, tag, fl=''):
        out = []
        for i in range(n):
            grp = []
            if i == 0:
                grp.append(f's_add_u32 m0, {smbase}, {lds_off}')
                grp.append(f's_add_u32 {sD0}, {sg}, {g_off}')
            grp.append(Ins(f'buffer_load_dwordx4 {vaddr}, {WSR}, {sD0} offen offset:{i * 1024}{fl} lds', tag))
            out.append(grp)
        return out

    def spin_tail(self, L):
        return lines(f's_add_u32 {sSpin}, {sSpin}, 1\ns_cmp_lt_u32 {sSpin}, {SPIN_LIMIT}\ns_cbranch_scc1 {L}')

    def poll(self, so, n, val):
        p = self.p
        L, D = p.newlabel('spin'), p.newlabel('ok')
        self.e(f'v_and_b32 {vB0}, {(n - 1) * 4}, {vL4}')
        p.label(L)
        self.e(f'buffer_load_dword {vB1}, {vB0}, {WSR}, {so} offen sc1')
        self.e('s_waitcnt vmcnt(0)')
        self.e(f'v_cmp_gt_u32 vcc, {val}, {vB1}')
        self.e(f's_cbranch_vccz {D}')
        self.e(self.spin_tail(L))
        p.label(D)

    def lazy_check(self, load, test):
        p = self.p
        L, B = p.newlabel('retry'), p.newlabel('back')
        self.ool += [Pseudo('label', L), Pseudo('drained'), Ins(load), Ins('s_waitcnt vmcnt(0)')] + [Ins(t) for t in test]
        self.ool += [Ins(f's_cbranch_vccz {B}')] + [Ins(t) for t in self.spin_tail(L)] + [Ins(f's_branch {B}')]
        return [load], list(test) + [f's_cbranch_vccnz {L}', Pseudo('label', B)]

    def publish_ins(self, so, val, tag='st'):
        return [f'v_mov_b32 {vFlag}, {val}', wait(vm=tag), 's_mov_b64 exec, 1',
                Ins(f'buffer_store_dword {vFlag}, off, {WSR}, {so}{self.sc}', 'flag'), 's_mov_b64 exec, -1']

    def publish(self, so, val):
        self.e(self.publish_ins(so, val))

    def w2reg(self, ls, c, layer):
        slot = {6: 0, 2: 1, 3: 2, 4: 3, 5: 4, 1: 5, 0: 6}[ls]
        if slot < 5:
            return WOR.q(slot * 5 + c)
        ext = X1A if (layer == 0 and self.o['stash']) else STASH
        return ext.q((slot - 5) * 5 + c)

    def unit(self, name, layer):
        if name == 'WO':
            out = [[self.ld(WOR.q(5 * s + c), vB2, (5 * s + c) * 1024, tag='wo', val=f'wo{s}_{c}') for c in range(5)] for s in range(5)]
            out[0][0] = [f'v_add_u32 {vB2}, {sWO}, {vL16}', out[0][0]]
            return out
        if name == 'W1A':
            return [self.dma(sW4K, L_R0 + b * 16384, vW4, sW1, b * 16384, 4, 'w1') for b in range(5)]
        if name == 'W1E':
            return [self.dma(sW4K, L_R1, vW4, sW1B, 0, 4, 'w1'), self.dma(sW4K, L_R1 + 16384, vW4, sW1B, 16384, 4, 'w1'),
                    self.dma(sW1K, L_R1 + 32768, vT16, sW1B, 32768, 1, 'w1')]
        if name == 'W1L':
            return [self.dma(sW1K, L_R1 + 36864, vT16, sW1B, 36864, 1, 'w1'), self.dma(sW4K, L_R1 + 40960, vW4, sW1O, 0, 4, 'w1'),
                    self.dma(sW1K, L_R1 + 57344, vT16, sW1O, 16384, 1, 'w1')]
        if name in ('W2R', 'W2X'):
            out = []
            for ls in ((6, 2, 3, 4, 5) if name == 'W2R' else (1, 0)):
                blk = []
                for c in range(5):
                    if ls == 0:
                        x = self.ld(self.w2reg(ls, c, layer), vB3, c * 1024 if c < 4 else 0, so=sDum if c < 4 else sD1, tag='w2', val=f'w2_{ls}_{c}')
                        blk.append(x if c < 4 else [f's_add_u32 {sD1}, {sDum}, 4096', x])
                    else:
                        blk.append(self.ld(self.w2reg(ls, c, layer), vB3, ls * 5120 + c * 1024, tag='w2', val=f'w2_{ls}_{c}'))
                out.append(blk)
            return out
        if name == 'W2A':
            return [self.dma(sLA, b * 4096, vL16, sW2, 7 * 5120 + b * 4096, 4, 'w2a') for b in range(5)]
        if name == 'W2B':
            return [self.dma(sLB, b * 4096, vL16, sW2, 11 * 5120 + b * 4096, 4 if b < 3 else 3, 'w2b') for b in range(4)]
        if name == 'WQ':
            return [self.wq_chunk(c) for c in range(5)]
        if name == 'TOUCH':
            if layer:
                return [[]]
            assert HB == OB + 128 * XT
            t = V(216, 4)
            n = (16 * XT + 16 * HT) // 128 // 128
            return [[[f's_lshl_b32 {sT2}, {sJ}, 2', f's_add_u32 {sT2}, {sT2}, {sW}', f's_mul_i32 {sT3}, {sT2}, {20 * 128}',
                      f's_mul_i32 {sD1}, {sG}, {16 * XT}', f's_add_u32 {sT3}, {sT3}, {sD1}', f's_add_u32 {sT3}, {sT3}, {OB}',
                      f'v_min_u32 {t[0]}, {19 * 4}, {vL4}', f'v_lshlrev_b32 {t[0]}, 5, {t[0]}',
                      self.ld(t[2], t[0], 0, so=sT3)],
                     [f's_mul_i32 {sT3}, {sT2}, {54 * 128}', f's_mul_i32 {sD1}, {sG}, {16 * HT}', f's_add_u32 {sT3}, {sT3}, {sD1}',
                      f's_add_u32 {sT3}, {sT3}, {HB}', f'v_min_u32 {t[1]}, {53 * 4}, {vL4}', f'v_lshlrev_b32 {t[1]}, 5, {t[1]}',
                      self.ld(t[3], t[1], 0, so=sT3)]]]
        raise ValueError(name)

    def wq_chunk(self, c):
        if self.o.get('now'):
            return []
        return self.dma(sW4K, L_R0 + c * 16384, vW4, sWQ, c * 16384, 4, f'wq{c}', ' sc1')

    def take(self, slot, layer):
        out = []
        if self.o.get('now'):
            return out
        for u, a, b in self.sched[layer].get(slot, []):
            for i, blk in enumerate(self.unit(u, layer)[a:b]):
                self.used.add((u, a + i, layer))
                out += blk
        return out

    def x(self, *pairs):
        return None if self.o.get('now') else list(pairs)
```

```python
from kern2_a import *

LX, LQ, LU, LP = L_R1, L_R1 + 12288, L_R1 + 24576, L_R1 + 45056


class Start(Base):
    def startup(self):
        e, p = self.e, self.p
        t = [V(40 + i) for i in range(24)]
        vLane, vTok, vQ, vHH, vT32 = t[0], t[1], t[2], t[3], t[4]
        vR, vC = t[12], t[13]
        pX, pWq, pPhi, pWo, pW1, pB1, pW2, pB2 = 64, 66, 68, 70, 72, 74, 76, 78
        e('s_cmp_ge_u32 s2, 256\ns_cbranch_scc1 k_done')
        e("""s_load_dwordx8 s[64:71], s[0:1], 0
s_load_dwordx2 s[8:9], s[0:1], 88
s_load_dwordx8 s[72:79], s[0:1], 40
s_load_dwordx2 s[12:13], s[0:1], 72""")
        self.stamp('start')
        self.stamp('RT0')
        e(f"""s_getpc_b64 s[4:5]
s_lshr_b32 {sJ}, s2, 3
s_and_b32 {sG}, s2, 7
v_lshrrev_b32 {t[5]}, 6, v0
v_and_b32 {vLane}, 63, v0
v_and_b32 {vC}, 3, v0
v_readfirstlane_b32 {sW}, {t[5]}
s_lshl_b32 {sT0}, {sJ}, 11
s_add_u32 s4, s4, {sT0}
s_addc_u32 s5, s5, 0
v_lshl_add_u32 {t[6]}, {t[5]}, 2, {vC}
v_lshlrev_b32 {t[6]}, 7, {t[6]}
v_mov_b32 {t[7]}, 0
v_lshl_add_u64 v[46:47], v[46:47], 0, s[4:5]
global_load_dword {t[23]}, v[46:47], off
v_lshlrev_b32 {vT16}, 4, v0
v_lshlrev_b32 {vL16}, 4, {vLane}
s_lshl_b32 {sW1K}, {sW}, 10
s_lshl_b32 {sD1}, {sG}, 5
s_add_u32 {sD1}, {sD1}, {sJ}
s_mul_i32 {sT0}, {sD1}, 10240
s_mul_i32 {sT1}, {sG}, {80 * 3840}
s_mul_i32 {sT2}, {sJ}, 40
s_and_b32 {sT2}, {sT2}, 0xfffffff0
s_add_u32 {sT1}, {sT1}, {sT2}
s_mov_b32 {sT3}, {(1 << 32) // 3 + 1}""")
        for i in range(3):
            e(f"""v_add_u32 {t[5]}, {i * 256}, v0
v_mul_hi_u32 {t[6]}, {t[5]}, {sT3}
v_mul_u32_u24 {t[6]}, {1280 - 48}, {t[6]}
v_lshl_add_u32 {t[14 + i]}, {t[5]}, 4, {t[6]}""")
        e(wait(lgkm='*'))
        e(f's_add_u32 s80, s8, {EP}\ns_addc_u32 s81, s9, 0')
        e(f's_load_dword {sEp}, s[80:81], 0')
        self.srd(16, pX, 2048 * 1280)
        self.srd(4, pWq, 640 * 3840)
        for i in range(3):
            e(f's_add_u32 m0, {sW1K}, {LX + i * 4096}')
            e(f'buffer_load_dwordx4 {vT16}, s[16:19], {sT0} offen lds', 'x')
            e(f's_add_u32 m0, {sW1K}, {LQ + i * 4096}')
            e(f's_add_u32 {sT0}, {sT0}, 4096')
            e(f'buffer_load_dwordx4 {t[14 + i]}, s[4:7], {sT1} offen lds', 'x')
        self.srd(8, 8, WS_BYTES)
        self.srd(12, 12, 2048 * 1280)
        e(f"""v_lshrrev_b32 {vQ}, 4, {vLane}
v_bfe_u32 {vR}, {vLane}, 2, 2
v_lshl_add_u32 {t[11]}, {vQ}, 3, {vR}""")
        vU, vU4 = t[14], t[15]
        sUd, sUc = sF1p, sF1c
        sK, sH = sF3p, sF3c
        e('s_cmp_ge_u32 s2, 108\ns_cbranch_scc1 st_w2')
        self.srd(92, pW1, 640 * 3456)
        e(f"""s_mul_i32 {sK}, s2, {(1 << 16) // 27 + 1}
s_lshr_b32 {sK}, {sK}, 16
s_mul_i32 {sH}, {sK}, 27
s_sub_u32 {sH}, s2, {sH}
s_mul_i32 {sT0}, {sK}, {160 * 3456}
s_lshl_b32 {sT1}, {sH}, 7
s_add_u32 {sT0}, {sT0}, {sT1}
v_lshrrev_b32 {t[5]}, 3, v0
v_and_b32 {t[6]}, 7, v0
v_mul_u32_u24 {t[5]}, 3456, {t[5]}
v_lshl_add_u32 {t[5]}, {t[6]}, 4, {t[5]}""")
        for i in range(5):
            e(f's_add_u32 m0, {sW1K}, {LU + i * 4096}')
            e(f'buffer_load_dwordx4 {t[5]}, s[92:95], {sT0} offen lds', 'u')
            e(f's_add_u32 {sT0}, {sT0}, {32 * 3456}')
        e(f"""v_lshlrev_b32 {vU}, 7, {t[11]}
v_lshl_add_u32 {vU}, {vC}, 4, {vU}
s_lshr_b32 {sT0}, {sW}, 1
s_lshl_b32 {sT0}, {sT0}, 6
s_and_b32 {sT1}, {sW}, 1
s_lshl_b32 {sT1}, {sT1}, 3
s_add_u32 {sT0}, {sT0}, {sT1}
s_add_u32 {sT0}, {sT0}, {LU}
v_add_u32 {vU}, {sT0}, {vU}
s_lshl_b32 {sT1}, {sH}, 2
s_add_u32 {sT1}, {sT1}, {sW}
s_mul_i32 {sUd}, {sT1}, 20480
s_mul_i32 {sT0}, {sK}, 5120
s_add_u32 {sUd}, {sUd}, {sT0}
s_add_u32 {sUd}, {sUd}, {W1P}
s_mul_i32 {sUc}, {sK}, {108 * 64}
s_lshl_b32 {sT1}, {sT1}, 6
s_add_u32 {sUc}, {sUc}, {sT1}
s_add_u32 {sUc}, {sUc}, {CS1}
s_branch st_j1""")
        p.label('st_w2')
        p.items.append(Pseudo('dropvm', 5))
        m = (sF4p, sF4c, sF5p, sF5c)
        e(f"""s_cmp_ge_u32 s2, 216
s_cselect_b32 s92, s{pWo}, s{pW2}
s_cselect_b32 s93, s{pWo + 1}, s{pW2 + 1}
s_mov_b32 s94, {640 * 1280}
s_cselect_b32 s94, s94, {1728 * 1280}
s_mov_b32 s95, 0x20000
s_mov_b32 {sK}, 216
s_cselect_b32 {sK}, {sK}, 108
s_mov_b32 {sUd}, {WO}
s_cselect_b32 {sUd}, {sUd}, {W2P}
s_cselect_b32 {sUc}, 20, 54
s_sub_u32 {sK}, s2, {sK}
s_and_b32 {sH}, {sK}, 1
s_lshr_b32 {sK}, {sK}, 1
s_mul_i32 {sT0}, {sK}, 52
s_lshr_b32 {sT0}, {sT0}, 8
s_mul_i32 {sT1}, {sT0}, 5
s_sub_u32 {sT1}, {sK}, {sT1}
s_mul_i32 {sT0}, {sT0}, 160
s_mul_i32 {m[0]}, {sT1}, 40
s_cmp_eq_u32 {sT1}, 4
s_cselect_b32 {m[0]}, 16, {m[0]}
s_cselect_b32 {m[1]}, 40, 20
s_cselect_b32 {m[2]}, 20, 8
s_cselect_b32 {m[3]}, 80, 4
s_add_u32 {sT0}, {sT0}, {m[0]}
s_lshl_b32 {m[0]}, {sK}, 5
s_cmp_eq_u32 {sUc}, 20
s_cselect_b32 {sT0}, {sT0}, {m[0]}
s_cselect_b32 {m[1]}, {m[1]}, 16
s_cselect_b32 {m[2]}, {m[2]}, 8
s_cselect_b32 {m[3]}, {m[3]}, 4
s_mul_i32 {sT0}, {sT0}, 1280
s_mul_i32 {sT1}, {sH}, 640
s_add_u32 {sT0}, {sT0}, {sT1}
s_mov_b32 {sT1}, {(1 << 32) // 40 + 1}""")
        for i in range(5):
            e(f"""v_add_u32 {t[5]}, {i * 256}, v0
v_mul_hi_u32 {t[6]}, {t[5]}, {sT1}
v_mul_u32_u24 {t[7]}, 40, {t[6]}
v_sub_u32 {t[5]}, {t[5]}, {t[7]}
v_and_b32 {t[7]}, 3, {t[6]}
v_bfe_u32 {t[8]}, {t[6]}, 2, 1
v_mad_u32_u24 {t[7]}, {t[8]}, {m[3]}, {t[7]}
v_bfe_u32 {t[8]}, {t[6]}, 3, 1
v_mad_u32_u24 {t[7]}, {t[8]}, {m[2]}, {t[7]}
v_lshrrev_b32 {t[8]}, 4, {t[6]}
v_mad_u32_u24 {t[7]}, {t[8]}, {m[1]}, {t[7]}
v_mul_u32_u24 {t[7]}, 1280, {t[7]}
v_lshl_add_u32 {t[6]}, {t[5]}, 4, {t[7]}
s_add_u32 m0, {sW1K}, {LU + i * 4096}""")
            e(f'buffer_load_dwordx4 {t[6]}, s[92:95], {sT0} offen lds', 'u')
        e(f"""v_mul_u32_u24 {vU}, 640, {t[11]}
s_mul_i32 {sT0}, {sW}, 160
s_add_u32 {sT0}, {sT0}, {LU}
v_add_u32 {vU}, {sT0}, {vU}
v_lshl_add_u32 {vU4}, {vC}, 3, {vU}
v_lshl_add_u32 {vU}, {vC}, 4, {vU}
s_lshl_b32 {sT0}, {sH}, 2
s_add_u32 {sT0}, {sT0}, {sW}
s_mul_i32 {sT0}, {sT0}, {sUc}
s_add_u32 {sT0}, {sT0}, {sK}
s_mul_i32 {sT0}, {sT0}, 5120
s_add_u32 {sUd}, {sUd}, {sT0}""")
        p.label('st_j1')
        self.srd(16, pPhi, 32 * 800)
        e(f's_mul_i32 {sT0}, {sJ}, 800\ns_mov_b32 m0, {LP}')
        e(f'buffer_load_dwordx4 {vL16}, s[16:19], {sT0} offen lds', 'u')
        self.srd(92, pB1, 1728 * 2)
        self.srd(96, pB2, 640 * 2)
        for i in range(1, 18):
            e(f's_mov_b32 s{KBASE + i}, {i * 4096}')
        e(f"""v_and_b32 {vTok}, 15, {vLane}
v_lshrrev_b32 {vHH}, 5, {vLane}
v_and_b32 {vT32}, 31, {vLane}
v_lshlrev_b32 {vL4}, 2, {vLane}
s_mov_b32 {sSpin}, 0""")
        XF, XM, QF = V(64, 12), V(76, 4), V(80, 12)
        vXr, vXw, vXs, vQr, vQc = t[16], t[17], t[18], t[19], t[20]
        sXd, sXd2, sXs, sMk, sQd, sQd2, sQc, sQn = sOl[0], sOl[1], sOl[2], sOl[3], sHl[0], sHl[1], sHl[2], sHl[3]
        tabs = wq_colbyte_tables()
        e(f"""v_and_b32 {t[5]}, 7, v0
v_lshrrev_b32 {t[6]}, 3, v0
v_mul_u32_u24 {vXr}, 1280, {t[5]}
v_lshl_add_u32 {vXr}, {t[6]}, 4, {vXr}
v_add_u32 {vXr}, {LX}, {vXr}
v_lshlrev_b32 {vXw}, 8, {t[6]}
v_lshl_add_u32 {vXw}, {t[5]}, 4, {vXw}
v_lshlrev_b32 {vXs}, 9, {vHH}
v_lshl_add_u32 {vXs}, {t[5]}, 4, {vXs}
v_bfe_u32 {t[6]}, {vLane}, 3, 1
v_lshl_add_u32 {vXs}, {t[6]}, 2, {vXs}
s_lshr_b32 {sT0}, {sD1}, 1
s_and_b32 {sT1}, {sD1}, 1
s_lshl_b32 {sT1}, {sT1}, 7
s_mul_i32 {sXd}, {sT0}, {XT}
s_add_u32 {sXd}, {sXd}, {sT1}
v_add_u32 {vXw}, {sXd}, {vXw}
s_lshl_b32 {sXs}, {sT0}, 10
s_add_u32 {sXs}, {sXs}, {sT1}
s_lshr_b32 {sT2}, {sW}, 1
s_and_b32 {sT3}, {sW}, 1
s_lshl_b32 {sT0}, {sT2}, 8
s_add_u32 {sXs}, {sXs}, {sT0}
s_lshl_b32 {sT0}, {sT3}, 3
s_add_u32 {sXs}, {sXs}, {sT0}
s_add_u32 {sXs}, {sXs}, {ST}
s_mul_i32 {sWQ}, {sJ}, 81920
s_add_u32 {sWQ}, {sWQ}, {WQ}
s_mul_i32 {sT0}, {sG}, 10240
s_add_u32 {sQd}, {sWQ}, {sT0}
s_mul_i32 {sT0}, {sT2}, 6144
s_add_u32 {sQd}, {sQd}, {sT0}
s_lshl_b32 {sT0}, {sT3}, 10
s_add_u32 {sQd}, {sQd}, {sT0}
s_add_u32 {sQd2}, {sQd}, 4096
s_mov_b32 {sXd2}, 16384
s_cmp_ge_u32 {sW}, 2
s_cselect_b32 {sXd2}, {OOB}, {sXd2}
s_cselect_b32 {sQd2}, {OOB}, {sQd2}
s_cselect_b32 {sMk}, 0, -1
s_cselect_b32 {sDum}, {OOB}, 0
s_lshl_b32 {sQc}, {sJ}, 12
s_lshl_b32 {sT0}, {sG}, 9
s_add_u32 {sQc}, {sQc}, {sT0}
s_lshl_b32 {sT0}, {sW}, 7
s_add_u32 {sQc}, {sQc}, {sT0}
s_add_u32 {sQc}, {sQc}, {CSQ}
s_cmp_eq_u32 {sT3}, 1
s_mov_b32 {sT0}, {tabs[1, 0][0]}
s_cselect_b32 {sT0}, {sT0}, {tabs[0, 0][0]}
s_mov_b32 {sT1}, {tabs[1, 0][1]}
s_cselect_b32 {sT1}, {sT1}, {tabs[0, 0][1]}
s_cselect_b32 {sQn}, 28, 32
v_mov_b32 {t[5]}, {sT0}
v_mov_b32 {t[6]}, {sT1}
v_and_b32 {t[7]}, 1, {vQ}
v_cmp_eq_u32 vcc, 1, {t[7]}
v_cndmask_b32 {t[5]}, {t[5]}, {t[6]}, vcc
v_lshlrev_b32 {t[6]}, 3, {vC}
v_bfe_u32 {t[5]}, {t[5]}, {t[6]}, 8
v_lshl_add_u32 {t[6]}, {vHH}, 3, {vR}
v_mul_u32_u24 {t[6]}, 144, {t[6]}
s_mul_i32 {sT0}, {sT2}, {48 * 144}
s_and_b32 {sT1}, {sJ}, 1
s_lshl_b32 {sT1}, {sT1}, 3
s_add_u32 {sT0}, {sT0}, {sT1}
s_add_u32 {sT0}, {sT0}, {LQ}
v_add3_u32 {vQr}, {t[5]}, {t[6]}, {sT0}
v_lshlrev_b32 {vQc}, 2, {vT32}
v_cmp_gt_u32 vcc, {sQn}, {vT32}""")
        PZ = V(92, 6)
        e(f"""s_lshl_b32 {sT1}, {sJ}, 14
s_lshl_b32 {sT2}, {sG}, 11
s_add_u32 {sT1}, {sT1}, {sT2}
s_add_u32 {sKVp}, {sT1}, {KV}
v_mov_b32 {PZ[0]}, -1
v_mov_b32 {PZ[1]}, -1
v_mov_b32 {PZ[2]}, -1
v_mov_b32 {PZ[3]}, -1
v_mov_b32 {PZ[4]}, 0
v_lshrrev_b32 {t[5]}, 7, v0
v_and_b32 {t[6]}, 0x7ff, {vT16}
v_lshl_add_u32 {t[5]}, {t[5]}, 19, {t[6]}
s_lshl_b32 {sT1}, {sD1}, 8
s_add_u32 {sT1}, {sT1}, {FL}
v_mov_b32 {PZ[5]}, {ONES}""")
        e(self.st(PZ[0:4], t[5], sKVp, 0, ' sc1'))
        e(self.st(PZ[4], vL4, sT1, 0, ' sc1'))
        e(f"""s_getreg_b32 {sMode}, hwreg(HW_REG_XCC_ID, 0, 4)
s_mul_i32 {sFA}, {sEp}, 0x9e3779b1
s_xor_b32 {sFB}, {sFA}, 0xa5a5a5a5
s_add_u32 {sFA}, {sFA}, 1""")
        e(wait(vm='x'))
        e('s_barrier')
        self.stamp('p0_in')
        for i in range(3):
            e(f'ds_read_b64_tr_b16 {QF.q(i)[0:2]}, {vQr} offset:{i * 16 * 144}')
            e(f'ds_read_b64_tr_b16 {QF.q(i)[2:4]}, {vQr} offset:{i * 16 * 144 + 4 * 144}')
        for i in range(3):
            e(f'ds_read_b128 {XF.q(i)}, {vXr} offset:{i * 512}')
        for i, (so, o) in enumerate(((sQd, 0), (sQd, 2048), (sQd2, 0))):
            for r in range(4):
                e(f'v_cndmask_b32 {QF.q(i)[r]}, 0, {QF.q(i)[r]}, vcc')
            e(self.st(QF.q(i), vL16, so, o, ' sc1'))
        for i, so in enumerate(('0', K(8192)[0], sXd2)):
            e(self.st(XF.q(i), vXw, so, 0, ' sc1'))
        a, b, c, d = t[5], t[6], t[7], t[8]
        for r in range(4):
            e(f'v_and_b32 {XM[r]}, {sMk}, {XF[8 + r]}')
        for i, r in enumerate([XF[k] for k in range(8)] + [XM[k] for k in range(4)]):
            e(f'v_dot2_f32_bf16 {a}, {r}, {PZ[5]}, {a if i else 0}')
            e(f'v_dot2_f32_bf16 {b}, {r}, {r}, {b if i else 0}')
        for r in range(4):
            e(f'v_and_b32 {XM[r]}, {sMk}, {QF[8 + r]}')
        e(stat_reduce(a, b, c))
        e(self.st(a, vXs, sXs, 0, ' sc1'))
        for i, r in enumerate([QF[k] for k in range(8)] + [XM[k] for k in range(4)]):
            e(f'v_dot2_f32_bf16 {d}, {r}, {PZ[5]}, {d if i else 0}')
        e(f'v_mov_b32 {c}, {d}\nv_permlane32_swap_b32 {d}, {c}\nv_add_f32 {d}, {d}, {c}')
        e(self.st(d, vQc, sQc, 0, ' sc1'))
        FG = V(98, 2)
        e(f"""s_add_u32 {sT0}, {sFA}, {sMode}
v_mov_b32 {FG[0]}, {sT0}
v_mov_b32 {FG[1]}, {sFB}
s_lshl_b32 {sT0}, s2, 7
s_add_u32 {sT0}, {sT0}, {PA}
s_cmp_eq_u32 {sW}, 0
s_cselect_b32 {sT0}, {sT0}, {OOB}""")
        e(wait(vm='*'))
        e('s_barrier')
        e('s_mov_b64 exec, 1')
        e(f'buffer_store_dwordx2 {FG}, off, {WSR}, {sT0} sc1')
        e('s_mov_b64 exec, -1')
        self.stamp('p0_pub')
        UF = V(64, 20)
        e('s_cmp_ge_u32 s2, 108\ns_cbranch_scc1 st_w2b')
        for i in range(5):
            e(f'ds_read_b64_tr_b16 {UF.q(i)[0:2]}, {vU} offset:{i * 4096}')
            e(f'ds_read_b64_tr_b16 {UF.q(i)[2:4]}, {vU} offset:{i * 4096 + 512}')
        for i in range(20):
            e(f'v_dot2_f32_bf16 {a}, {UF[i]}, {PZ[5]}, {a if i else 0}')
        e(f"""v_mov_b32 {b}, {a}
v_permlane32_swap_b32 {a}, {b}
v_add_f32 {a}, {a}, {b}
v_mov_b32 {b}, {a}
v_permlane16_swap_b32 {a}, {b}
v_add_f32 {a}, {a}, {b}
s_branch st_j2""")
        p.label('st_w2b')
        for k in range(5):
            ad, o = (vU, (k >> 1) * 64 + (k & 1) * 8) if k < 4 else (vU4, 128)
            e(f'ds_read_b64_tr_b16 {UF.q(k)[0:2]}, {ad} offset:{o}')
            e(f'ds_read_b64_tr_b16 {UF.q(k)[2:4]}, {ad} offset:{o + 4 * 640}')
        e(f's_mov_b32 {sUc}, {OOB}')
        e(wait(lgkm='*'))
        p.label('st_j2')
        e(f'v_lshlrev_b32 {b}, 2, {vTok}\ns_add_u32 {sT0}, {sUd}, 4096')
        for i in range(5):
            so, o = (sUd, i * 1024) if i < 4 else (sT0, 0)
            e(self.st(UF.q(i), vL16, so, o, ' sc1'))
        e(self.st(a, b, sUc, 0, ' sc1'))
        self.setup2(t)
        self.stamp('p0_set')
        L, D = p.newlabel('spin'), p.newlabel('ok')
        e(f"""v_lshl_add_u32 {t[5]}, {vT32}, 3, {sG}
v_and_b32 {t[6]}, 7, {vLane}
s_lshl_b32 {sT0}, {sJ}, 3
v_add_u32 {t[6]}, {sT0}, {t[6]}
v_cmp_eq_u32 vcc, 0, {vHH}
v_cndmask_b32 {t[5]}, {t[6]}, {t[5]}, vcc
v_lshlrev_b32 {t[5]}, 7, {t[5]}
s_mov_b32 {sT0}, {PA}""")
        p.label(L)
        e(f'buffer_load_dwordx2 {FG}, {t[5]}, {WSR}, {sT0} offen sc1')
        e('s_waitcnt vmcnt(0)')
        e(f"""v_subrev_u32 {FG[0]}, {sFA}, {FG[0]}
v_xor_b32 {FG[1]}, {sFB}, {FG[1]}
v_and_or_b32 {FG[1]}, {FG[0]}, -16, {FG[1]}
v_cmp_ne_u32 vcc, 0, {FG[1]}
s_cbranch_vccz {D}""")
        e(self.spin_tail(L))
        p.label(D)
        self.stamp('p0_poll')
        e(self.wq_chunk(0))
        CQ = V(208, 16)
        e(f's_lshl_b32 {sT1}, {sJ}, 12\ns_add_u32 {sT1}, {sT1}, {CSQ}')
        for i in range(4):
            e(self.ld(CQ.q(i), vL16, i * 1024, ' sc1', so=sT1))
        self.p1_first_loads()
        e(self.wq_chunk(1))
        e(f'v_cmp_ne_u32 vcc, {sMode}, {FG[0]}')
        e(f's_mov_b32 {sMode}, vcc_lo')
        if self.o['force'] is not None:
            e(f's_mov_b32 {sMode}, {self.o["force"]}')
        for i in range(1, 4):
            for h in range(2):
                e(f'v_pk_add_f32 {CQ[2*h:2*h+2]}, {CQ[2*h:2*h+2]}, {CQ[4*i+2*h:4*i+2*h+2]}')
        for sw in ('v_permlane32_swap_b32', 'v_permlane16_swap_b32'):
            for i in range(4):
                e(f'v_mov_b32 {CQ[4+i]}, {CQ[i]}')
            for i in range(4):
                e(f'{sw} {CQ[i]}, {CQ[4+i]}')
            for h in range(2):
                e(f'v_pk_add_f32 {CQ[2*h:2*h+2]}, {CQ[2*h:2*h+2]}, {CQ[4+2*h:6+2*h]}')
        e(f'v_lshlrev_b32 {t[5]}, 4, {vTok}')
        e(f'ds_write_b128 {t[5]}, {CQ[0:4]} offset:{L_CQ}')

    vC1a, vC1w = V(232), V(233)

    def setup2(self, t):
        e = self.e
        vLane, vTok, vQ, vHH, vT32 = t[0], t[1], t[2], t[3], t[4]
        e(f"""s_lshl_b32 {sW4K}, {sW}, 12
v_add_u32 {vW4}, {sW4K}, {vL16}
v_lshlrev_b32 {vHH16}, 4, {vHH}
v_lshlrev_b32 {vQ16}, 4, {vQ}
s_lshr_b32 {sTB}, {sJ}, 3
s_and_b32 {sCS}, {sJ}, 7
s_lshr_b32 {sTH}, {sJ}, 4
s_and_b32 {sFS}, {sJ}, 15""")
        e(f"""s_lshr_b32 {sT2}, {sFS}, 2
s_mul_i32 {sT3}, {sT2}, 13
s_min_u32 {sT2}, {sT2}, 1
s_add_u32 {sT3}, {sT3}, {sT2}
s_and_b32 {sT2}, {sFS}, 3
s_add_u32 {sD0}, {sT3}, {sT2}
s_add_u32 {sT0}, {sD0}, {sT2}
s_add_u32 {sT0}, {sT0}, 6
s_add_u32 {sD0}, {sD0}, 2
s_xor_b32 {sT1}, {sT2}, 2
s_lshl_b32 {sT3}, {sT3}, 1
s_add_u32 {sT1}, {sT1}, {sT3}
s_and_b32 {sT2}, {sFS}, 10
s_cmp_eq_u32 {sT2}, 10
s_cselect_b32 {sT1}, 255, {sT1}""")
        for f in range(16):
            b0, b2, od, lh = p3_blocks(f)
            kb = (f >> 2) * 13 + min(f >> 2, 1)
            assert b0 == kb + 2 * (f & 3) + 6 and b2 == kb + (f & 3) + 2
            assert (od is None) == ((f & 10) == 10) and (od is None or 2 * od + lh == 2 * kb + ((f & 3) ^ 2))
        BB = V(240, 4)
        e(f"""v_lshrrev_b32 {t[5]}, 2, {vT32}
s_lshl_b32 {sT2}, {sT0}, 1
v_add_u32 {t[6]}, {sT2}, {t[5]}
s_lshl_b32 {sT2}, {sD0}, 1
s_sub_u32 {sT2}, {sT2}, 4
v_add_u32 {t[7]}, {sT2}, {t[5]}
v_cmp_gt_u32 vcc, 4, {t[5]}
v_cndmask_b32 {t[6]}, {t[7]}, {t[6]}, vcc
v_mov_b32 {t[7]}, {sT1}
v_cmp_gt_u32 vcc, 6, {t[5]}
v_cndmask_b32 {t[6]}, {t[7]}, {t[6]}, vcc
v_and_b32 {t[7]}, 3, {vLane}
v_lshrrev_b32 {t[9]}, 1, {t[6]}
v_lshlrev_b32 {t[9]}, 6, {t[9]}
v_lshl_add_u32 {t[9]}, {t[7]}, 4, {t[9]}
v_and_b32 {t[10]}, 1, {t[6]}
v_lshl_add_u32 {t[9]}, {t[10]}, 3, {t[9]}""")
        e(f'buffer_load_dwordx2 {BB[0:2]}, {t[9]}, s[92:95], 0 offen')
        e(f"""v_lshlrev_b32 {t[8]}, 6, {t[6]}
v_lshl_add_u32 {t[8]}, {t[7]}, 4, {t[8]}
v_mul_u32_u24 {t[9]}, {108 * 64}, {vHH}
v_add_u32 {t[8]}, {t[8]}, {t[9]}
v_add_u32 {t[8]}, {CS1}, {t[8]}
v_mov_b32 {t[9]}, {OOB}
v_cmp_gt_u32 vcc, 108, {t[6]}
v_cndmask_b32 {self.vC1a}, {t[9]}, {t[8]}, vcc""")
        e(f"""v_lshrrev_b32 {t[9]}, 1, {t[5]}
v_lshlrev_b32 {t[9]}, 6, {t[9]}
v_and_b32 {t[10]}, 1, {t[5]}
v_lshl_add_u32 {t[9]}, {t[10]}, 3, {t[9]}
v_lshl_add_u32 {t[10]}, {t[7]}, 4, {t[9]}
v_lshl_add_u32 {t[9]}, {t[7]}, 3, {t[9]}
v_cmp_gt_u32 vcc, 4, {t[5]}
v_cndmask_b32 {t[9]}, {t[9]}, {t[10]}, vcc
s_mul_i32 {sT2}, {sCS}, 160""")
        e(f'buffer_load_dwordx2 {BB[2:4]}, {t[9]}, s[96:99], {sT2} offen')
        e(f"""s_mul_i32 {sW1}, {sT0}, 40960
s_add_u32 {sW1}, {sW1}, {W1P}
s_mul_i32 {sW1B}, {sD0}, 40960
s_add_u32 {sW1B}, {sW1B}, {W1P}
s_mul_i32 {sW1O}, {sT1}, 20480
s_add_u32 {sW1O}, {sW1O}, {W1P}
s_lshl_b32 {sT2}, {sG}, 4
s_lshl_b32 {sT3}, {sTH}, 3
s_add_u32 {sT2}, {sT2}, {sT3}
s_lshl_b32 {sT3}, {sW}, 1
s_add_u32 {sT2}, {sT2}, {sT3}
s_mul_i32 {sX3}, {sT2}, {XT}
s_lshl_b32 {sST3}, {sT2}, 10
s_add_u32 {sST3}, {sST3}, {ST}
s_mul_i32 {sT2}, {sT2}, {HT}
s_add_u32 {sT2}, {sT2}, {HB}
s_lshl_b32 {sT3}, {sT0}, 10
s_add_u32 {sHo}, {sT2}, {sT3}
s_lshl_b32 {sT3}, {sD0}, 10
s_add_u32 {sHoB}, {sT2}, {sT3}
s_lshr_b32 {sT3}, {sT1}, 1
s_lshl_b32 {sT3}, {sT3}, 10
s_add_u32 {sHoO}, {sT2}, {sT3}
s_and_b32 {sT3}, {sT1}, 1
s_lshl_b32 {sT3}, {sT3}, 3
s_add_u32 {sHoO}, {sHoO}, {sT3}
s_cmp_eq_u32 {sT1}, 255
s_cselect_b32 {sW1O}, {OOB}, {sW1O}
s_cselect_b32 {sHoO}, {OOB}, {sHoO}""")
        WT = V(244, 12)
        e(f"""v_and_b32 {t[9]}, 3, {vLane}
v_lshrrev_b32 {t[10]}, 3, {vT32}
v_lshl_add_u32 {t[9]}, {t[10]}, 2, {t[9]}
v_min_u32 {t[9]}, 9, {t[9]}
v_bfe_u32 {t[10]}, {vLane}, 2, 1
v_mad_u32_u24 {t[10]}, {t[10]}, 10, {t[9]}
v_lshlrev_b32 {t[10]}, 1, {t[10]}
v_add_u32 {t[10]}, {LP}, {t[10]}
v_mul_u32_u24 {t[11]}, 320, {vHH}
v_add_u32 {t[11]}, {t[11]}, {t[10]}""")
        for i in range(8):
            e(f'ds_read_u16 {WT[i]}, {t[11]} offset:{i * 40}')
        for i in range(4):
            e(f'ds_read_u16 {WT[8 + i]}, {t[10]} offset:{(16 + i) * 40}')
        assert XA == 0 and OOB == 1 << 25
        e(f"""s_lshl_b32 {sT0}, {sG}, 4
s_lshl_b32 {sT1}, {sW}, 2
s_add_u32 {sT0}, {sT0}, {sT1}
v_and_b32 {t[5]}, 1, {vQ}
v_add_u32 {t[5]}, {sT0}, {t[5]}
v_mul_u32_u24 {t[6]}, {XT}, {t[5]}
v_lshl_add_u32 {t[6]}, {vTok}, 4, {t[6]}
v_lshl_add_u32 {vXP1}, {vHH}, 8, {t[6]}
v_lshlrev_b32 {t[7]}, 10, {t[5]}
v_lshl_add_u32 {t[7]}, {vTok}, 4, {t[7]}
v_lshl_add_u32 {t[7]}, {vHH}, 9, {t[7]}
v_add_u32 {vSP1}, {ST}, {t[7]}
s_mul_i32 {sT1}, {sTB}, 5120
s_add_u32 {sT1}, {sT1}, {OB}
s_lshl_b32 {sT3}, {sCS}, 9
s_add_u32 {sT3}, {sT3}, {sT1}
v_add_u32 {vOA}, {sT3}, {vXP1}
s_and_b32 {sT3}, {sCS}, 3
s_lshl_b32 {sT3}, {sT3}, 8
s_add_u32 {sT1}, {sT1}, {sT3}
s_lshr_b32 {sT3}, {sCS}, 2
s_lshl_b32 {sT3}, {sT3}, 3
s_add_u32 {sT1}, {sT1}, {sT3}
s_add_u32 {sT1}, {sT1}, 4096
v_add_u32 {vOL}, {sT1}, {t[6]}
v_lshl_add_u32 {vOL}, {vHH}, 25, {vOL}""")
        e(f"""s_lshl_b32 {sT0}, {sG}, 4
s_lshl_b32 {sT1}, {sTB}, 2
s_add_u32 {sT0}, {sT0}, {sT1}
s_mul_i32 {sT3}, {sW}, 13
s_min_u32 {sT1}, {sW}, 1
s_add_u32 {sT3}, {sT3}, {sT1}
s_mul_i32 {sD0}, {sW}, 5120
s_add_u32 {sD0}, {sD0}, {OB}
s_lshl_b32 {sD1}, {sT3}, 10
s_add_u32 {sD1}, {sD1}, {HB}""")
        for u in range(4):
            e(f"""s_add_u32 {sT1}, {sW}, {u + 1}
s_and_b32 {sT1}, {sT1}, 3
s_add_u32 {sT1}, {sT1}, {sT0}
s_mul_i32 {sOl[u]}, {sT1}, {XT}
s_add_u32 {sOl[u]}, {sOl[u]}, {sD0}
s_mul_i32 {sHl[u]}, {sT1}, {HT}
s_add_u32 {sHl[u]}, {sHl[u]}, {sD1}""")
        e(f"""s_mul_i32 {sW2}, {sCS}, {54 * 5120}
s_mul_i32 {sT2}, {sT3}, 5120
s_add_u32 {sW2}, {sW2}, {sT2}
s_add_u32 {sW2}, {sW2}, {W2P}
v_add_u32 {vB3}, {sW2}, {vL16}
s_mul_i32 {sWO}, {sCS}, {20 * 5120}
s_mul_i32 {sT2}, {sW}, 25600
s_add_u32 {sWO}, {sWO}, {sT2}
s_add_u32 {sWO}, {sWO}, {WO}
s_add_u32 {sT0}, {sT0}, {sW}
s_mul_i32 {sXo}, {sT0}, {XT}
s_mul_i32 {sT2}, {sCS}, 160
s_add_u32 {sOut}, {sXo}, {sT2}
s_mul_i32 {sT2}, {sCS}, 2560
s_add_u32 {sXo}, {sXo}, {sT2}
s_lshl_b32 {sSTo}, {sT0}, 10
s_lshr_b32 {sT2}, {sCS}, 2
s_lshl_b32 {sT2}, {sT2}, 8
s_add_u32 {sSTo}, {sSTo}, {sT2}
s_and_b32 {sT2}, {sCS}, 3
s_lshl_b32 {sT2}, {sT2}, 2
s_add_u32 {sSTo}, {sSTo}, {sT2}
s_add_u32 {sSTo}, {sSTo}, {ST}
s_mul_i32 {sLA}, {sW}, 20480
s_add_u32 {sLA}, {sLA}, {L_R0}
s_mul_i32 {sLB}, {sW}, 15360
s_add_u32 {sLB}, {sLB}, {L_R1}
v_lshlrev_b32 {vX4}, 8, {vHH}
v_lshl_add_u32 {vX4}, {vTok}, 4, {vX4}
v_and_b32 {t[5]}, 1, {vQ}
v_lshl_add_u32 {vX4}, {t[5]}, 3, {vX4}
v_lshlrev_b32 {vSTs}, 9, {vHH}
v_lshl_add_u32 {vSTs}, {vTok}, 4, {vSTs}""")
        for i in range(6):
            e(f'v_lshl_or_b32 {WT[2*i]}, {WT[2*i+1]}, 16, {WT[2*i]}')
        for i in range(4):
            e(f'v_accvgpr_write_b32 {WPH[i]}, {WT[2*i]}')
        e(f'v_cmp_eq_u32 vcc, 0, {vHH}')
        for i in range(2):
            e(f'v_accvgpr_write_b32 {WPH[6+i]}, 0')
            e(f'v_accvgpr_write_b32 {WPH[10+i]}, 0')
            e(f'v_cndmask_b32 {t[5]}, 0, {WT[8+2*i]}, vcc')
            e(f'v_cndmask_b32 {t[6]}, {WT[8+2*i]}, 0, vcc')
            e(f'v_accvgpr_write_b32 {WPH[4+i]}, {t[5]}')
            e(f'v_accvgpr_write_b32 {WPH[8+i]}, {t[6]}')
        e(f'''s_lshl_b32 {sT0}, {sG}, 13
s_add_u32 {sT0}, {sT0}, {FL}
s_lshl_b32 {sT1}, {sTB}, 7
s_lshl_b32 {sT2}, {sCS}, 4
s_add_u32 {sT1}, {sT1}, {sT2}
s_lshl_b32 {sT2}, {sW}, 2
s_add_u32 {sT1}, {sT1}, {sT2}
s_add_u32 {sF1p}, {sT0}, {sT1}
s_lshl_b32 {sT1}, {sW}, 7
s_add_u32 {sF1c}, {sT0}, {sT1}
s_lshl_b32 {sT1}, {sTB}, 9
s_lshl_b32 {sT2}, {sW}, 7
s_add_u32 {sT1}, {sT1}, {sT2}
s_lshl_b32 {sT2}, {sCS}, 2
s_add_u32 {sT1}, {sT1}, {sT2}
s_add_u32 {sT1}, {sT1}, {F3}
s_add_u32 {sF3p}, {sT0}, {sT1}
s_lshl_b32 {sT1}, {sW}, 9
s_lshl_b32 {sT2}, {sTB}, 7
s_add_u32 {sT1}, {sT1}, {sT2}
s_add_u32 {sT1}, {sT1}, {F3}
s_add_u32 {sF3c}, {sT0}, {sT1}
s_lshr_b32 {sD0}, {sW}, 1
s_lshl_b32 {sD0}, {sD0}, 7
s_and_b32 {sD1}, {sW}, 1
s_lshl_b32 {sD1}, {sD1}, 2
s_add_u32 {sD0}, {sD0}, {sD1}
s_lshl_b32 {sT1}, {sTB}, 8
s_lshl_b32 {sT2}, {sCS}, 3
s_add_u32 {sT1}, {sT1}, {sT2}
s_add_u32 {sT1}, {sT1}, {sD0}
s_add_u32 {sT1}, {sT1}, {F4}
s_add_u32 {sF4p}, {sT0}, {sT1}
s_lshl_b32 {sT1}, {sTH}, 9
s_lshl_b32 {sT2}, {sW}, 7
s_add_u32 {sT1}, {sT1}, {sT2}
s_add_u32 {sT1}, {sT1}, {F4}
s_add_u32 {sF4c}, {sT0}, {sT1}
s_lshr_b32 {sT1}, {sJ}, 2
s_lshl_b32 {sT1}, {sT1}, 8
s_and_b32 {sT2}, {sJ}, 3
s_lshl_b32 {sT2}, {sT2}, 3
s_add_u32 {sT1}, {sT1}, {sT2}
s_add_u32 {sT1}, {sT1}, {sD0}
s_add_u32 {sT1}, {sT1}, {F5}
s_add_u32 {sF5p}, {sT0}, {sT1}
s_lshl_b32 {sT1}, {sTH}, 10
s_lshl_b32 {sT2}, {sW}, 8
s_add_u32 {sT1}, {sT1}, {sT2}
s_and_b32 {sT2}, {sTB}, 1
s_lshl_b32 {sT2}, {sT2}, 7
s_add_u32 {sT1}, {sT1}, {sT2}
s_add_u32 {sT1}, {sT1}, {F5}
s_add_u32 {sF5c}, {sT0}, {sT1}''')
        e(f'''v_lshlrev_b32 {t[5]}, 4, {vT32}
v_add_u32 {t[5]}, {sW1K}, {t[5]}
v_add_u32 {t[5]}, {L_SCR}, {t[5]}
v_mul_u32_u24 {t[6]}, {PS}, {vHH}
v_add_u32 {vPW}, {t[5]}, {t[6]}
v_add_u32 {vVW}, {vPW}, {t[6]}
v_lshl_add_u32 {vBW}, {vHH}, 3, {t[5]}
v_lshrrev_b32 {t[5]}, 2, {vLane}
v_lshlrev_b32 {t[5]}, 4, {t[5]}
v_add_u32 {t[5]}, {L_SCR}, {t[5]}
v_and_b32 {t[6]}, 1, {vLane}
v_bfe_u32 {t[8]}, {vLane}, 1, 1
v_lshl_add_u32 {t[9]}, {t[6]}, 3, {t[5]}
v_cmp_eq_u32 vcc, 0, {t[8]}
v_add_u32 {t[10]}, {4 * PS}, {t[9]}
v_add_u32 {t[11]}, {5 * PS}, {t[5]}
v_cndmask_b32 {vTB0}, {t[11]}, {t[10]}, vcc
v_add_u32 {t[10]}, {6 * PS}, {t[9]}
v_add_u32 {t[11]}, {5 * PS + 8}, {t[5]}
v_cndmask_b32 {vTB1}, {t[11]}, {t[10]}, vcc
v_mul_u32_u24 {t[10]}, {PS}, {t[8]}
v_add_u32 {t[10]}, {t[10]}, {t[9]}
s_mul_i32 {sT1}, {sW}, {2 * PS}
v_add_u32 {t[10]}, {sT1}, {t[10]}
v_lshl_add_u32 {t[11]}, {t[8]}, 3, {t[5]}
v_add_u32 {t[11]}, {7 * PS}, {t[11]}
v_cmp_gt_u32 vcc, 128, v0
v_cndmask_b32 {vTA}, {t[11]}, {t[10]}, vcc''')
        e(f'''v_lshrrev_b32 {t[5]}, 4, v0
v_add_u32 {t[6]}, 8, {vHH}
v_cndmask_b32 {t[5]}, {t[6]}, {t[5]}, vcc
v_mad_u32_u24 {t[5]}, {t[5]}, 12, {vTok}
v_lshlrev_b32 {t[5]}, 4, {t[5]}
v_mov_b32 {t[9]}, {OOB}
v_and_b32 {t[6]}, 0x50, v0
v_cndmask_b32 {t[6]}, {t[6]}, 0, vcc
v_cmp_eq_u32 vcc, 0, {t[6]}
v_cndmask_b32 {t[5]}, {t[9]}, {t[5]}, vcc
v_cmp_gt_u32 vcc, 12, {vTok}
v_cndmask_b32 {vKVp}, {t[9]}, {t[5]}, vcc
s_lshl_b32 {sT1}, {sJ}, 14
s_add_u32 {sT1}, {sT1}, {KV}
v_lshlrev_b32 {t[5]}, 3, v0
v_add_u32 {t[5]}, {sT1}, {t[5]}
v_cmp_gt_u32 vcc, 240, v0
v_cndmask_b32 {vKVg}, {t[9]}, {t[5]}, vcc''')
        e(f'''v_mul_u32_u24 {t[5]}, 2731, v0
v_lshrrev_b32 {t[5]}, 16, {t[5]}
v_mul_u32_u24 {t[6]}, 24, {t[5]}
v_sub_u32 {t[6]}, v0, {t[6]}
v_lshrrev_b32 {t[8]}, 1, {t[6]}
v_and_b32 {t[9]}, 1, {t[6]}
v_and_b32 {t[10]}, 3, {t[8]}
v_lshrrev_b32 {t[8]}, 2, {t[8]}
v_lshl_add_u32 {t[10]}, {t[8]}, 3, {t[10]}
v_lshl_add_u32 {t[10]}, {t[9]}, 2, {t[10]}
v_cmp_eq_u32 vcc, 17, {t[6]}
v_cndmask_b32 {t[10]}, {t[10]}, 28, vcc
v_cmp_eq_u32 vcc, 19, {t[6]}
v_cndmask_b32 {t[10]}, {t[10]}, 24, vcc
v_lshlrev_b32 {t[8]}, 1, {t[5]}
v_subrev_u32 {t[8]}, 8, {t[8]}
v_cmp_gt_u32 vcc, 8, {t[5]}
v_cndmask_b32 {t[5]}, {t[8]}, {t[5]}, vcc
v_lshrrev_b32 {t[8]}, 1, {t[5]}
v_lshlrev_b32 {t[8]}, 9, {t[8]}
v_lshl_add_u32 {t[8]}, {t[10]}, 4, {t[8]}
v_and_b32 {t[5]}, 1, {t[5]}
v_lshl_add_u32 {t[8]}, {t[5]}, 3, {t[8]}
v_add_u32 {vIW}, {IMG}, {t[8]}
v_add_u32 {vIR}, {IMG}, {vL16}
v_mul_u32_u24 {vOne}, 0x3f80, {vHH}
v_lshl_add_u32 {vOne}, {vOne}, 16, {vOne}''')
        e(f"""v_lshlrev_b32 {t[5]}, 4, {vT32}
v_cmp_gt_u32 vcc, 28, {vT32}
v_mov_b32 {t[6]}, 1280
v_cndmask_b32 {self.vC1w}, {t[6]}, {t[5]}, vcc
v_cmp_gt_u32 vcc, 20, {vT32}
v_mov_b32 {t[6]}, 512
v_cndmask_b32 {t[9]}, {t[6]}, {t[5]}, vcc""")
        U = V(244, 8)
        for k in range(2):
            for i in range(2):
                e(f'v_lshlrev_b32 {U[4*k+2*i]}, 16, {BB[2*k+i]}')
                e(f'v_and_b32 {U[4*k+2*i+1]}, 0xffff0000, {BB[2*k+i]}')
        e(f'ds_write_b128 {self.vC1w}, {U[0:4]} offset:{L_B1}')
        e(f'ds_write_b128 {t[9]}, {U[4:8]} offset:{L_B2}')
```

```python
XA = 0x000000
OB = 0x280000
HB = 0x500000
ST = 0xBC0000
KV = 0xC00000
FL = 0xD00000
CS1 = 0xD10000
CSQ = 0xD20000
PA = 0xD40000
PB = 0xD48000
EP = 0xD50000
TS = 0xD60000
WQ = 0xE00000
WO = 0x1080000
W1P = 0x1180000
W2P = 0x1400000
WS_BYTES = 0x2000000
OOB = 0x2000000

XT = 20480
HT = 55296

F1 = 0
F3 = 512
F4 = 2560
F5 = 3584
FX = 5632

L_CQ = 0
L_C1 = 256
L_B1 = 704
L_B2 = 1152
L_R0 = 2048
L_R1 = L_R0 + 81920
L_END = 163840
L_SCR = L_END - 40960


def p3_blocks(fs):
    Q, i = fs >> 2, fs & 3
    kb = (0, 14, 27, 40)[Q]
    odd = kb + 1 if i < 2 else (kb if Q < 2 else None)
    return kb + 6 + 2 * i, kb + 2 + i, odd, i & 1


SPLIT_BLOCKS = (0, 1, 14, 15, 28, 41)


def wo_row(ks, rho):
    Qh, s = divmod(ks, 5)
    q, i = rho >> 3, rho & 7
    if s < 4:
        return 20 * (8 * Qh + 2 * s + (q >> 1)) + 8 * (q & 1) + i
    return 20 * (8 * Qh + q + 4 * (i >> 2)) + 16 + (i & 3)
```

```python
from asmlib import *
from layout import *

ONES = '0x3f803f80'


def srd(p, s, lo, nbytes):
    p.e(f's_mov_b32 s{s}, s{lo}\ns_mov_b32 s{s+1}, s{lo+1}\ns_mov_b32 s{s+2}, {nbytes}\ns_mov_b32 s{s+3}, 0x20000')


def stat_reduce(a, b, t):
    return [f'v_permlane32_swap_b32 {a}, {b}',
            f'v_add_f32 {a}, {a}, {b}',
            f'v_mov_b32 {t}, {a}',
            f'v_permlane16_swap_b32 {a}, {t}',
            f'v_add_f32 {a}, {a}, {t}']


def wq_colbyte_tables():
    tabs = {}
    for T in range(2):
        for odd in range(2):
            dl = 8 * odd
            base, lbase = 0, 16
            ent = []
            for mc in range(8):
                rq, hh = mc >> 1, mc & 1
                if T == 0:
                    if rq < 2:
                        b = 48 + dl + 2 * (8 * hh + 4 * rq)
                    else:
                        b = 96 + dl + 2 * (base + 8 * hh + 4 * (rq - 2))
                else:
                    if rq < 2:
                        b = dl + 2 * (8 * hh + 4 * rq)
                    elif rq == 2:
                        b = (48 if hh == 0 else 0) + dl + 32
                    else:
                        b = 96 + dl + 2 * lbase if hh == 0 else 0
                ent.append(b)
            lo = sum(ent[i] << (8 * i) for i in range(4))
            hi = sum(ent[4 + i] << (8 * i) for i in range(4))
            tabs[T, odd] = (lo, hi)
    return tabs


def gen_prepass(name):
    p = Prog()
    LX, LQ, LU = 0, 12288, 24576
    done = 'pre_done'
    p.e(f's_cmp_ge_u32 s2, 256\ns_cbranch_scc1 {done}')
    p.e('''s_load_dwordx4 s[40:43], s[0:1], 0
s_load_dwordx2 s[44:45], s[0:1], 24
s_load_dwordx2 s[46:47], s[0:1], 40
s_load_dwordx2 s[48:49], s[0:1], 56
s_load_dwordx2 s[50:51], s[0:1], 88''')
    p.e('''s_and_b32 s20, s2, 7
s_lshr_b32 s21, s2, 3
v_lshrrev_b32 v1, 6, v0
v_and_b32 v2, 63, v0
v_readfirstlane_b32 s22, v1
v_lshlrev_b32 v3, 4, v0
v_lshlrev_b32 v4, 4, v2
s_lshl_b32 s23, s22, 10''')
    p.e(wait(lgkm='*'))
    srd(p, 8, 50, WS_BYTES)
    srd(p, 12, 40, 2048 * 1280)
    srd(p, 16, 42, 640 * 3840)
    p.e('''s_lshl_b32 s24, s20, 5
s_add_u32 s24, s24, s21
s_mul_i32 s25, s24, 10240''')
    for i in range(3):
        p.e(f's_add_u32 m0, s23, {LX + i*4096}')
        p.e(f's_add_u32 s26, s25, {i*4096}')
        p.e('buffer_load_dwordx4 v3, s[12:15], s26 offen lds', 'x')
    p.e(f'''s_mul_i32 s26, s20, {80*3840}
s_mul_i32 s27, s21, 40
s_and_b32 s27, s27, 0xfffffff0
s_add_u32 s26, s26, s27
s_mov_b32 s28, {(1 << 32) // 3 + 1}''')
    for i in range(3):
        p.e(f'''v_add_u32 v5, {i*256}, v0
v_mul_hi_u32 v6, v5, s28
v_mul_u32_u24 v7, 3, v6
v_sub_u32 v7, v5, v7
v_mul_u32_u24 v6, 1280, v6
v_lshl_add_u32 v6, v7, 4, v6
s_add_u32 m0, s23, {LQ + i*4096}''')
        p.e('buffer_load_dwordx4 v6, s[16:19], s26 offen lds', 'q')
    p.e('''v_lshrrev_b32 v8, 4, v2
v_bfe_u32 v9, v2, 2, 2
v_and_b32 v10, 3, v2''')
    p.e('s_cmp_ge_u32 s2, 108\ns_cbranch_scc1 pre_w2')
    srd(p, 32, 46, 640 * 3456)
    p.e(f'''s_mul_i32 s26, s2, {(1 << 16) // 27 + 1}
s_lshr_b32 s26, s26, 16
s_mul_i32 s27, s26, 27
s_sub_u32 s27, s2, s27
s_mul_i32 s28, s26, {160*3456}
s_lshl_b32 s29, s27, 7
s_add_u32 s28, s28, s29
v_lshrrev_b32 v5, 3, v0
v_and_b32 v6, 7, v0
v_mul_u32_u24 v5, 3456, v5
v_lshl_add_u32 v5, v6, 4, v5''')
    for i in range(5):
        p.e(f's_add_u32 m0, s23, {LU + i*4096}')
        p.e('buffer_load_dwordx4 v5, s[32:35], s28 offen lds', 'u')
        p.e(f's_add_u32 s28, s28, {32*3456}')
    p.e(f'''v_lshl_add_u32 v11, v8, 3, v9
v_lshlrev_b32 v11, 7, v11
v_lshl_add_u32 v11, v10, 4, v11
s_lshr_b32 s28, s22, 1
s_lshl_b32 s28, s28, 6
s_and_b32 s29, s22, 1
s_lshl_b32 s29, s29, 3
s_add_u32 s28, s28, s29
v_add_u32 v11, s28, v11
s_lshl_b32 s36, s27, 2
s_add_u32 s36, s36, s22
s_mul_i32 s30, s36, 20480
s_mul_i32 s28, s26, 5120
s_add_u32 s30, s30, s28
s_add_u32 s30, s30, {W1P}
s_mul_i32 s37, s26, {108*64}
s_lshl_b32 s36, s36, 6
s_add_u32 s37, s37, s36
s_add_u32 s37, s37, {CS1}''')
    p.e(wait(vm='*'))
    p.e('s_barrier')
    for i in range(5):
        p.e(f'ds_read_b64_tr_b16 v[{20+4*i}:{21+4*i}], v11 offset:{LU + i*4096}')
        p.e(f'ds_read_b64_tr_b16 v[{22+4*i}:{23+4*i}], v11 offset:{LU + i*4096 + 512}')
    p.e(f'v_mov_b32 v12, {ONES}\nv_mov_b32 v13, 0')
    for i in range(20):
        p.e(f'v_dot2_f32_bf16 v13, v{20+i}, v12, v13')
    p.e('''v_mov_b32 v14, v13
v_permlane32_swap_b32 v13, v14
v_add_f32 v13, v13, v14
v_mov_b32 v14, v13
v_permlane16_swap_b32 v13, v14
v_add_f32 v13, v13, v14
v_and_b32 v14, 15, v2
v_lshlrev_b32 v14, 2, v14''')
    p.e('buffer_store_dword v13, v14, s[8:11], s37 offen')
    p.e(wait(vm='*', lgkm='*'))
    p.e('s_branch pre_ustore')
    p.label('pre_w2')
    p.items.append(Pseudo('drained'))
    p.e(f'''s_cmp_ge_u32 s2, 216
s_cselect_b32 s32, s44, s48
s_cselect_b32 s33, s45, s49
s_cselect_b32 s34, {640*1280}, {1728*1280 - 0}
s_mov_b32 s35, 0x20000
s_cselect_b32 s26, 216, 108
s_cselect_b32 s30, {WO}, {W2P}
s_cselect_b32 s36, {20*5120}, {54*5120}'''.replace(f's_cselect_b32 s34, {640*1280}, {1728*1280}', f's_mov_b32 s34, {640*1280}\ns_cselect_b32 s34, s34, {1728*1280}')
        .replace('s_cselect_b32 s26, 216, 108', 's_mov_b32 s26, 216\ns_cselect_b32 s26, s26, 108')
        .replace(f's_cselect_b32 s30, {WO}, {W2P}', f's_mov_b32 s30, {WO}\ns_cselect_b32 s30, s30, {W2P}')
        .replace(f's_cselect_b32 s36, {20*5120}, {54*5120}', f's_mov_b32 s36, {20*5120}\ns_cselect_b32 s36, s36, {54*5120}'))
    p.e(f'''s_cselect_b32 s39, 1, 0
s_sub_u32 s26, s2, s26
s_and_b32 s27, s26, 1
s_lshr_b32 s26, s26, 1
s_mul_i32 s28, s26, 52
s_lshr_b32 s28, s28, 8
s_mul_i32 s29, s28, 5
s_sub_u32 s29, s26, s29
s_mul_i32 s28, s28, 160
s_mul_i32 s52, s29, 40
s_cmp_eq_u32 s29, 4
s_cselect_b32 s52, 16, s52
s_cselect_b32 s53, 40, 20
s_cselect_b32 s54, 20, 8
s_cselect_b32 s55, 80, 4
s_add_u32 s28, s28, s52
s_lshl_b32 s52, s26, 5
s_cmp_eq_u32 s39, 1
s_cselect_b32 s28, s28, s52
s_cselect_b32 s53, s53, 16
s_cselect_b32 s54, s54, 8
s_cselect_b32 s55, s55, 4
s_mul_i32 s28, s28, 1280
s_mul_i32 s29, s27, 640
s_add_u32 s28, s28, s29
s_mov_b32 s29, {(1 << 32) // 40 + 1}''')
    for i in range(5):
        p.e(f'''v_add_u32 v5, {i*256}, v0
v_mul_hi_u32 v6, v5, s29
v_mul_u32_u24 v7, 40, v6
v_sub_u32 v5, v5, v7
v_and_b32 v7, 3, v6
v_bfe_u32 v12, v6, 2, 1
v_mad_u32_u24 v7, v12, s55, v7
v_bfe_u32 v12, v6, 3, 1
v_mad_u32_u24 v7, v12, s54, v7
v_lshrrev_b32 v12, 4, v6
v_mad_u32_u24 v7, v12, s53, v7
v_mul_u32_u24 v7, 1280, v7
v_lshl_add_u32 v6, v5, 4, v7
s_add_u32 m0, s23, {LU + i*4096}''')
        p.e('buffer_load_dwordx4 v6, s[32:35], s28 offen lds', 'u')
    p.e(f'''v_lshl_add_u32 v11, v8, 3, v9
v_mul_u32_u24 v11, 640, v11
s_mul_i32 s28, s22, 160
v_add_u32 v11, s28, v11
v_lshl_add_u32 v12, v10, 3, v11
v_lshl_add_u32 v11, v10, 4, v11
s_lshl_b32 s28, s27, 2
s_add_u32 s28, s28, s22
s_mul_i32 s28, s28, s36
s_add_u32 s30, s30, s28
s_mul_i32 s28, s26, 5120
s_add_u32 s30, s30, s28''')
    p.e('s_waitcnt vmcnt(0)')
    p.e('s_barrier')
    for t in range(5):
        a, o = ('v11', (t >> 1) * 64 + (t & 1) * 8) if t < 4 else ('v12', 128)
        p.e(f'ds_read_b64_tr_b16 v[{20+4*t}:{21+4*t}], {a} offset:{LU + o}')
        p.e(f'ds_read_b64_tr_b16 v[{22+4*t}:{23+4*t}], {a} offset:{LU + o + 4*640}')
    p.e(wait(vm='*', lgkm='*'))
    p.label('pre_ustore')
    p.e('s_add_u32 s31, s30, 4096')
    for i in range(5):
        so, o = ('s30', i * 1024) if i < 4 else ('s31', 0)
        p.e(f'buffer_store_dwordx4 v[{20+4*i}:{23+4*i}], v4, s[8:11], {so} offen offset:{o}')
    p.e(f'''v_and_b32 v5, 7, v0
v_lshrrev_b32 v6, 3, v0
v_mul_u32_u24 v7, 1280, v5
v_lshl_add_u32 v7, v6, 4, v7''')
    for i in range(3):
        p.e(f'ds_read_b128 v[{44+4*i}:{47+4*i}], v7 offset:{LX + i*512}')
    p.e(f'''s_lshr_b32 s26, s24, 1
s_and_b32 s27, s24, 1
s_lshl_b32 s27, s27, 7
s_mul_i32 s28, s26, {XT}
s_add_u32 s28, s28, s27
s_add_u32 s28, s28, {XA}
s_add_u32 s29, s28, 8192
s_add_u32 s36, s28, 16384
s_cmp_ge_u32 s22, 2
s_cselect_b32 s36, {OOB}, s36
s_cselect_b32 s37, 0, -1
v_lshlrev_b32 v12, 8, v6
v_lshl_add_u32 v12, v5, 4, v12''')
    for i, so in enumerate(('s28', 's29', 's36')):
        p.e(f'buffer_store_dwordx4 v[{44+4*i}:{47+4*i}], v12, s[8:11], {so} offen')
    for i in range(4):
        p.e(f'v_and_b32 v{56+i}, s37, v{52+i}')
    p.e(f'v_mov_b32 v13, {ONES}\nv_mov_b32 v14, 0\nv_mov_b32 v15, 0')
    for r in list(range(44, 52)) + list(range(56, 60)):
        p.e(f'v_dot2_f32_bf16 v14, v{r}, v13, v14')
        p.e(f'v_dot2_f32_bf16 v15, v{r}, v{r}, v15')
    p.e(stat_reduce('v14', 'v15', 'v16'))
    p.e(f'''v_lshrrev_b32 v16, 5, v2
v_lshlrev_b32 v16, 9, v16
v_lshl_add_u32 v16, v5, 4, v16
v_bfe_u32 v17, v2, 3, 1
v_lshl_add_u32 v16, v17, 2, v16
s_lshl_b32 s28, s26, 10
s_add_u32 s28, s28, s27
s_lshr_b32 s29, s22, 1
s_lshl_b32 s29, s29, 8
s_add_u32 s28, s28, s29
s_and_b32 s29, s22, 1
s_lshl_b32 s29, s29, 3
s_add_u32 s28, s28, s29
s_add_u32 s28, s28, {ST}''')
    p.e('buffer_store_dword v14, v16, s[8:11], s28 offen')
    tabs = wq_colbyte_tables()
    p.e(f'''s_and_b32 s26, s22, 1
s_and_b32 s27, s21, 1
s_cmp_eq_u32 s27, 1
s_mov_b32 s28, {tabs[0,1][0]}
s_cselect_b32 s28, s28, {tabs[0,0][0]}
s_mov_b32 s29, {tabs[0,1][1]}
s_cselect_b32 s29, s29, {tabs[0,0][1]}
s_mov_b32 s30, {tabs[1,1][0]}
s_cselect_b32 s30, s30, {tabs[1,0][0]}
s_mov_b32 s31, {tabs[1,1][1]}
s_cselect_b32 s31, s31, {tabs[1,0][1]}
s_cmp_eq_u32 s26, 1
s_cselect_b32 s28, s30, s28
s_cselect_b32 s29, s31, s29
s_cselect_b32 s38, 28, 32
v_mov_b32 v5, s28
v_mov_b32 v6, s29
v_and_b32 v7, 1, v8
v_cmp_eq_u32 vcc, 1, v7
v_cndmask_b32 v5, v5, v6, vcc
v_lshlrev_b32 v6, 3, v10
v_bfe_u32 v5, v5, v6, 8
v_lshrrev_b32 v6, 1, v8
v_lshl_add_u32 v6, v6, 3, v9
v_mul_u32_u24 v6, 144, v6
v_add_u32 v5, v5, v6
s_lshr_b32 s27, s22, 1
s_mul_i32 s28, s27, {48*144}
v_add_u32 v5, s28, v5''')
    for i in range(3):
        p.e(f'ds_read_b64_tr_b16 v[{60+4*i}:{61+4*i}], v5 offset:{LQ + i*16*144}')
        p.e(f'ds_read_b64_tr_b16 v[{62+4*i}:{63+4*i}], v5 offset:{LQ + i*16*144 + 4*144}')
    p.e(f'''v_and_b32 v6, 31, v2
v_cmp_gt_u32 vcc, s38, v6
s_mul_i32 s28, s21, 81920
s_mul_i32 s29, s20, 10240
s_add_u32 s28, s28, s29
s_mul_i32 s29, s27, 6144
s_add_u32 s28, s28, s29
s_lshl_b32 s29, s26, 10
s_add_u32 s28, s28, s29
s_add_u32 s28, s28, {WQ}
s_add_u32 s29, s28, 4096
s_cmp_eq_u32 s27, 1
s_cselect_b32 s29, {OOB}, s29''')
    for r in range(60, 72):
        p.e(f'v_cndmask_b32 v{r}, 0, v{r}, vcc')
    for r in range(68, 72):
        p.e(f'v_and_b32 v{r}, s37, v{r}')
    for i, (so, o) in enumerate((('s28', 0), ('s28', 2048), ('s29', 0))):
        p.e(f'buffer_store_dwordx4 v[{60+4*i}:{63+4*i}], v4, s[8:11], {so} offen offset:{o}')
    p.e('v_mov_b32 v14, 0')
    for r in range(60, 72):
        p.e(f'v_dot2_f32_bf16 v14, v{r}, v13, v14')
    p.e(f'''v_mov_b32 v15, v14
v_permlane32_swap_b32 v14, v15
v_add_f32 v14, v14, v15
v_lshlrev_b32 v6, 2, v6
s_lshl_b32 s28, s21, 12
s_lshl_b32 s29, s20, 9
s_add_u32 s28, s28, s29
s_lshl_b32 s29, s22, 7
s_add_u32 s28, s28, s29
s_add_u32 s28, s28, {CSQ}''')
    p.e('buffer_store_dword v14, v6, s[8:11], s28 offen')
    p.e(f'''v_mov_b32 v72, -1
v_mov_b32 v73, -1
v_mov_b32 v74, -1
v_mov_b32 v75, -1
v_mov_b32 v76, 0
s_lshl_b32 s28, s2, 12
s_add_u32 s28, s28, {KV}
s_lshl_b32 s29, s2, 8
s_add_u32 s29, s29, {FL}
v_lshlrev_b32 v77, 2, v2''')
    p.e('buffer_store_dwordx4 v[72:75], v3, s[8:11], s28 offen')
    p.e('buffer_store_dword v76, v77, s[8:11], s29 offen')
    p.label(done)
    p.e('s_endpgm')
    return kernel_header(name) + p.finalize(), kernel_footer(name, vgpr=80, agpr_offset=80, sgpr=64)
```

```python
from kern2_b import *


class Gen(Start):
    P1ACC = V(40, 64)
    P1XR = V(104, 80)
    P1WF = V(184, 24)
    P1SL = V(184, 16)
    P1C = V(224, 8)

    def p1_xload(self, n):
        s, T = divmod(n, 2)
        D = self.o['xdepth']
        return self.ld(self.P1XR.q(n % (2 * D)), vXP1, T * 2 * XT + s * 512, ' sc1', tag='x', val=f'x{n}')

    def p1_first_loads(self):
        for T in range(2):
            for i in range(2):
                self.e(self.ld(self.P1SL.q(2 * T + i), vSP1, T * 2048 + i * 256, ' sc1'))
        for n in range(self.o.get('p1n0', 4)):
            self.e(self.p1_xload(n))

    def stats_finish(self, a, b, rstd, nmean):
        return [f'v_mul_f32 {nmean}, 0xbacccccd, {a}',
                f'v_mul_f32 {a}, {nmean}, {nmean}',
                f'v_fmac_f32 {a}, 0xbacccccd, {b}',
                f'v_min_f32 {a}, 0, {a}',
                f'v_sub_f32 {a}, 0x3727c5ac, {a}',
                f'v_rsq_f32 {rstd}, {a}']

    def p1_pre(self, layer):
        acc = lambda T, t: self.P1ACC.q(2 * T + t, 16)
        for t in range(2):
            for rq in range(4):
                self.e(f'ds_read_b128 {acc(0, t).q(rq)}, {vHH16} offset:{L_CQ + t * 128 + rq * 32}')

    def p1_main(self, layer):
        e = self.e
        ACC, XR, WF, SL, C = self.P1ACC, self.P1XR, self.P1WF, self.P1SL, self.P1C
        D = self.o['xdepth']
        dma_w = layer == 0 or not self.o['stash']
        acc = lambda T, t: ACC.q(2 * T + t, 16)
        seqs = []
        for T in range(2):
            L = SL.q(T, 8)
            seqs.append([f'v_pk_add_f32 {L[0:2]}, {L[0:2]}, {L[2:4]}',
                         f'v_pk_add_f32 {L[4:6]}, {L[4:6]}, {L[6:8]}',
                         f'v_pk_add_f32 {L[0:2]}, {L[0:2]}, {L[4:6]}',
                         f'v_add_f32 {L[0]}, {L[0]}, {L[1]}',
                         f'v_mov_b32 {L[1]}, {L[0]}',
                         f'v_permlane32_swap_b32 {L[0]}, {L[1]}'] +
                        self.stats_finish(L[0], L[1], C[4 * T], C[4 * T + 2]) +
                        [f'v_mul_f32 {C[4*T+1]}, {LOG2E}, {C[4*T]}'])
        body = [x for ab in zip(*seqs) for x in ab]
        body += [f'v_add_u32 {vB0}, {L_R0}, {vL16}', f'v_add_u32 {vB1}, {L_R0 + 40960}, {vL16}']

        def wread(s):
            out = []
            if s % 8 == 0 and (dma_w or s == 0):
                out += [wait(vm=f'wq{s // 8}', lgkm='rst'), 's_barrier']
            for t in range(2):
                off = s * 2048 + t * 1024
                b, off = (vB0, off) if off < 40960 else (vB1, off - 40960)
                out.append(f'ds_read_b128 {WF.q((2 * s + t) % 6)}, {b} offset:{off}')
            return out
        init = []
        for T in (1, 0):
            for i in range(16):
                init.append(f'v_pk_mul_f32 {ACC[32*T+2*i:32*T+2*i+2]}, {ACC[2*i:2*i+2]}, {C[4*T+2:4*T+4]} op_sel_hi:[1,0]')
        body += init[:20] + [wread(0) + wread(1)] + init[20:]
        n0 = self.o.get('p1n0', 4)
        n1 = min(2 * D, self.o.get('p1n1', 8))
        e(weave(body, [self.p1_xload(n) for n in range(n0, n1)]))
        self.stamp(f'p1_go{layer}')
        mm = []
        for s in range(40):
            for T in range(2):
                for t in range(2):
                    n = 2 * s + T
                    mm.append([Ins(f'{M32} {acc(T, t)}, {WF.q((2 * s + t) % 6)}, {XR.q(n % (2 * D))}, {acc(T, t)}', expect=[(XR.q(n % (2 * D)), f'x{n}')])])
            if s + 2 < 40:
                wr = wread(s + 2)
                mm[4 * s] += wr[:-1]
                mm[4 * s + 2] += wr[-1:]
        nxt, last = n1, 0
        for i in range(160):
            free = (i + 1) // 2 + 2 * D
            want = n1 + int((i + 1) * self.o.get('p1rate', 0.6))
            if nxt < 80 and nxt < free and nxt < want:
                mm[i].append(self.p1_xload(nxt))
                nxt += 1
                last = i
        assert nxt == 80
        if dma_w:
            wq = []
            for c in range(2, 5):
                wq += self.wq_chunk(c)
            for k, g in enumerate(wq):
                mm[8 * k + 2] += g
        if layer == 0:
            FG = V(208, 2)
            mm[0] += [f'v_mov_b32 {FG[0]}, {sFA}', f'v_mov_b32 {FG[1]}, {sFB}', f's_lshl_b32 {sT0}, s2, 3', f's_add_u32 {sT0}, {sT0}, {PB}',
                      f's_cmp_eq_u32 {sW}, 0', f's_cselect_b32 {sT0}, {sT0}, {OOB}', 's_mov_b64 exec, 1',
                      f'buffer_store_dwordx2 {FG}, off, {WSR}, {sT0} sc1', 's_mov_b64 exec, -1']
            mm[5] += [self.ld(RES[0:4], vL16, 0, ' sc1', so=sXo)]
            mm[9] += [self.ld(RES[4:8], vL16, 1024, ' sc1', so=sXo)]
            mm[13] += [self.ld(RES[8:10], vX4, 2048, ' sc1', so=sXo)]
            iss, chk = self.lazy_check(f'buffer_load_dwordx2 {FG}, {V(210)}, {WSR}, {sT1} offen sc1',
                                       [f'v_xor_b32 {FG[0]}, {sFA}, {FG[0]}', f'v_xor_b32 {FG[1]}, {sFB}, {FG[1]}',
                                        f'v_or_b32 {FG[0]}, {FG[0]}, {FG[1]}', f'v_cmp_ne_u32 vcc, 0, {FG[0]}'])
            mm[81] += [f'v_lshrrev_b32 {V(210)}, 1, {vT16}', f's_mov_b32 {sT1}, {PB}'] + iss
            mm[117] += chk
            last = max(last, 120)
            C1 = V(208, 8)
            mm[121] += [self.ld(C1[0:4], self.vC1a, 0, ' sc1')]
            mm[123] += [self.ld(C1[4:8], self.vC1a, 2 * 108 * 64, ' sc1')]
        tail = self.take('p1_tail', layer)
        k = min(len(tail), int((159 - last) * 0.75))
        if k:
            mm = weave(mm, tail[:k], last + 1, 160)
        mm = self.fine(mm, 'p1', layer, (0, 31, 63, 95, 127))
        e(mm)
        self.stamp(f'p1_mm{layer}')
        return tail[k:]

    def softmax(self, P, Sc, E, X, OUT):
        a, b = X[0], X[1]
        o = [f'v_max3_f32 {a}, {P[0]}, {P[1]}, {P[2]}', f'v_max3_f32 {b}, -{P[0]}, -{P[1]}, -{P[2]}']
        for i in (3, 5, 7):
            o += [f'v_max3_f32 {a}, {a}, {P[i]}, {P[i+1]}', f'v_max3_f32 {b}, {b}, -{P[i]}, -{P[i+1]}']
        o += [f'v_max_f32 {a}, {a}, {P[9]}', f'v_max_f32 {b}, {b}, -{P[9]}',
              f'v_permlane32_swap_b32 {a}, {b}',
              f'v_max_f32 {X[2]}, {a}, {b}',
              f'v_mul_f32 {a}, -{X[2]}, {Sc[1]}',
              f'v_mul_f32 {b}, -{X[2]}, {Sc[1]}',
              f'v_permlane32_swap_b32 {a}, {b}']
        for i in range(0, 10, 2):
            o.append(f'v_pk_fma_f32 {E[i:i+2]}, {Sc}, {P[i:i+2]}, {X[0:2]} op_sel:[1,0,0] op_sel_hi:[1,1,0]')
            o.append(f'v_pk_fma_f32 {E[10+i:12+i]}, {Sc}, {P[i:i+2]}, {X[0:2]} op_sel:[1,0,1] op_sel_hi:[1,1,1] neg_lo:[1,0,0] neg_hi:[1,0,0]')
        for i in range(20):
            o.append(f'v_exp_f32 {E[i]}, {E[i]}')
        o += [f'v_pk_add_f32 {X[0:2]}, {E[0:2]}, {E[2:4]}', f'v_pk_add_f32 {X[2:4]}, {E[10:12]}, {E[12:14]}']
        for i in (4, 6, 8):
            o += [f'v_pk_add_f32 {X[0:2]}, {X[0:2]}, {E[i:i+2]}', f'v_pk_add_f32 {X[2:4]}, {X[2:4]}, {E[10+i:12+i]}']
        o += [f'v_add_f32 {a}, {X[0]}, {X[1]}', f'v_add_f32 {b}, {X[2]}, {X[3]}',
              f'v_permlane32_swap_b32 {a}, {b}',
              f'v_add_f32 {a}, {a}, {b}',
              f'v_rcp_f32 {a}, {a}',
              f'v_mov_b32 {b}, {a}',
              f'v_permlane32_swap_b32 {a}, {b}']
        for i in range(0, 20, 2):
            sel = 'op_sel_hi:[0,1]' if i < 10 else 'op_sel:[1,0] op_sel_hi:[1,1]'
            o.append(f'v_pk_mul_f32 {E[i:i+2]}, {X[0:2]}, {E[i:i+2]} {sel}')
            o.append(f'v_cvt_pk_bf16_f32 {OUT[i//2]}, {E[i]}, {E[i+1]}')
        return o


    PP = V(136, 32)
    PH = V(232, 24)

    def p1_epilogue(self, layer, left):
        e, p = self.e, self.p
        ACC, C = self.P1ACC, self.P1C
        acc = lambda T, t: ACC.q(2 * T + t, 16)
        PK = V(104, 32)
        KA, MX, QA, VA = [[PK.q(4 * T + i) for T in range(2)] for i in range(4)]
        PP, PH = self.PP, self.PH
        EE = V(168, 40)
        XX = V(208, 8)
        rs = lambda T: C[4 * T:4 * T + 2]
        body = []
        for T in range(2):
            a0, a1 = acc(T, 0), acc(T, 1)
            P = PP.q(T, 16)
            body += cvt(KA[T], a0[0:8])
            body += [f'v_mul_f32 {a1[i]}, {a1[i]}, {C[4 * T]}' for i in range(12, 16)]
            body += [f'{M32} {P}, {WPH.q(0)}, {KA[T]}, 0']
            body += cvt(MX[T], a1[8:16])
            body += [f'v_or_b32 {MX[T][2]}, {vOne}, {MX[T][2]}']
            body += [Ins(f'ds_write_b64 {vBW}, {MX[T][2:4]} offset:{5 * PS + T * 512}', 'kw')]
            body += [f'v_mul_f32 {a0[8]}, {a0[8]}, {C[4 * T]}']
            body += [f'{M32} {P}, {WPH.q(1)}, {MX[T]}, {P}']
        for T in range(2):
            a0 = acc(T, 0)
            body += [f'v_mul_f32 {a0[i]}, {a0[i]}, {C[4 * T]}' for i in range(9, 16)]
            body += cvt(VA[T], a0[8:16])
            body += [Ins(f'ds_write_b128 {vVW}, {VA[T]} offset:{4 * PS + T * 512}', 'kw')]
        if layer == 0:
            C1 = V(208, 8)
            for i in range(4):
                body += [f'v_add_f32 {C1[i]}, {C1[i]}, {C1[4+i]}', f'v_mov_b32 {C1[4+i]}, {C1[i]}']
            body += [f'v_permlane32_swap_b32 {C1[i]}, {C1[4+i]}' for i in range(4)]
            body += [f'v_add_f32 {C1[i]}, {C1[i]}, {C1[4+i]}' for i in range(4)]
            body += [f'ds_write_b128 {self.vC1w}, {C1[0:4]} offset:{L_C1}']
        seqs = []
        for T in range(2):
            O = PH.q(T, 12)
            s = self.softmax(PP.q(T, 16), rs(T), EE.q(T, 20), XX.q(T), O)
            n = len(s)
            s.insert(n - 4, Ins(f'ds_write_b128 {vPW}, {O[4:8]} offset:{2 * PS + T * 512}', 'kw'))
            s.insert(n - 12, Ins(f'ds_write_b128 {vPW}, {O[0:4]} offset:{T * 512}', 'kw'))
            s.append(Ins(f'ds_write_b64 {vBW}, {O[8:10]} offset:{7 * PS + T * 512}', 'kw'))
            seqs.append(s)
        body += lagzip(seqs[0], seqs[1], self.o['lag'])
        for T in range(2):
            body += cvt(QA[T], acc(T, 1)[0:8])
        body = weave(body, left + self.take('kepi', layer), 0, len(body) * 3 // 4)
        if layer == 0 and self.o['stash']:
            st = [f'v_add_u32 {vB0}, {sLA}, {vL16}'] + [Ins(f'ds_read_b128 {STASH.q(i)}, {vB0} offset:{i * 1024}', 'kw') for i in range(20)]
            body = weave(body, st, len(body) // 3, len(body) * 2 // 3)
        e(body)
        for T in range(2):
            P = PP.q(T, 16)
            e(f'{M32} {P}, {WPH.q(0)}, {QA[T]}, 0')
            e(f'{M32} {P}, {WPH.q(2)}, {MX[T]}, {P}')
        e(wait(lgkm='kw'))
        e('s_barrier')
        self.stamp(f'kepi{layer}')
        FA, FB = V(40, 32), V(72, 32)
        FB1 = V(168, 32)
        KD = V(200, 8)
        rd = []
        for ks in range(8):
            g = []
            for dst, a in ((FA, vTA), (FB, vTB0), (FB1, vTB1)):
                for jj in range(2):
                    g.append(f'ds_read_b64_tr_b16 {dst.q(ks)[2*jj:2*jj+2]}, {a} offset:{ks * 512 + jj * 256}')
            rd.append(g)
        e(rd[0])
        e(rd[1])
        for ks in range(8):
            nx = rd[ks + 2] if ks + 2 < 8 else []
            e(f'{M16} {KD.q(0)}, {FA.q(ks)}, {FB.q(ks)}, {KD.q(0) if ks else 0}')
            e(nx[:3])
            e(f'{M16} {KD.q(1)}, {FA.q(ks)}, {FB1.q(ks)}, {KD.q(1) if ks else 0}')
            e(nx[3:])
        KO = V(40, 4)
        if layer:
            e(f's_add_u32 {sKVp}, {sKVp}, 0x80000\nv_add_u32 {vKVg}, 0x80000, {vKVg}')
        e(cvt(KO, KD))
        for i in range(4):
            e(f'v_min_u32 {KO[i]}, -2, {KO[i]}')
        e(self.st(KO, vKVp, sKVp, 0, ' sc1', 'kv'))
        self.stamp(f'kvst{layer}')
        G, GS, KF = V(48, 16), V(64, 4), V(72, 12)
        seqs = []
        for T in range(2):
            O = PH.q(T, 12)
            seqs.append(self.softmax(PP.q(T, 16), rs(T), EE.q(T, 20), XX.q(T), O) +
                        [f'v_mov_b32 {O[10]}, 0', f'v_mov_b32 {O[11]}, 0'])
        body = [x for ab in zip(*seqs) for x in ab]
        body += lines(f'v_mov_b32 {vB0}, 0x3f80\nv_mov_b32 {vB1}, 0x3f800000\nv_mov_b32 {KF[10]}, 0\nv_mov_b32 {KF[11]}, 0')
        gpos = int(len(body) * self.o.get('gpos', 1.0))
        body = weave(body, self.take('qepi', layer), 0, max(1, gpos // 2))
        gl = lambda: [self.ld(G.q(i, 2), vKVg, i * 2048, ' sc1') for i in range(8)]
        e(body[:gpos])
        e(gl())
        e(body[gpos:])
        self.stamp(f'qepi{layer}')
        L, Dn = p.newlabel('kvspin'), p.newlabel('kvok')
        p.label(L)
        t = XX[0]
        e(f'v_max_u32 {t}, {G[0]}, {G[1]}')
        for h in range(2):
            e(f'v_dot2_f32_bf16 {GS[2*h]}, {G[h]}, {vB0}, 0')
            e(f'v_dot2_f32_bf16 {GS[2*h+1]}, {G[h]}, {vB1}, 0')
        for i in range(1, 8):
            e(f'v_max3_u32 {t}, {t}, {G[2*i]}, {G[2*i+1]}')
            if i == 7:
                e(f'v_cmp_eq_u32 vcc, -1, {t}')
            for h in range(2):
                e(f'v_dot2_f32_bf16 {GS[2*h]}, {G[2*i+h]}, {vB0}, {GS[2*h]}')
                e(f'v_dot2_f32_bf16 {GS[2*h+1]}, {G[2*i+h]}, {vB1}, {GS[2*h+1]}')
        p.items.append(Pseudo('assert_empty', 'gather'))
        e(f's_cbranch_vccz {Dn}')
        e(gl())
        e(self.spin_tail(L))
        e('s_waitcnt vmcnt(0)')
        p.label(Dn)

    def p1_out(self, layer):
        e = self.e
        PP, PH = self.PP, self.PH
        G, GS, KF = V(48, 16), V(64, 4), V(72, 12)
        e('s_nop 1')
        e(cvt(G[0:2], GS))
        e(f'ds_write_b64 {vIW}, {G[0:2]}', 'iw')
        self.stamp(f'gath{layer}')
        e(self.take('img', layer))
        e(wait(lgkm='iw'))
        e('s_barrier')
        e(f'ds_read_b128 {KF[0:4]}, {vIR}')
        e(f'ds_read_b128 {KF[4:8]}, {vIR} offset:1024')
        e(f'ds_read_b64 {KF[8:10]}, {vIR} offset:2048')
        for T in range(2):
            for s in range(3):
                P = PP.q(T, 16)
                e(f'{M32} {P}, {KF.q(s)}, {PH.q(T, 12).q(s)}, {P if s else 0}')
        OO = V(88, 16)
        for T in range(2):
            P = PP.q(T, 16)
            O = OO.q(T, 8)
            e(f'v_add_f32 {P[12]}, 0x358637bd, {P[12]}')
            e(f'v_rcp_f32 {P[12]}, {P[12]}')
            for i in range(0, 12, 2):
                if T == 0 and i < 6:
                    e(f'v_mul_f32 {P[i]}, {P[i]}, {P[12]}\nv_mul_f32 {P[i+1]}, {P[i+1]}, {P[12]}')
                else:
                    e(f'v_pk_mul_f32 {P[i:i+2]}, {P[i:i+2]}, {P[12:14]} op_sel_hi:[1,0]')
                e(f'v_cvt_pk_bf16_f32 {O[i//2]}, {P[i]}, {P[i+1]}')
                if i == 6:
                    e(self.st(O[0:4], vOA, K(T * 2 * XT)[0]))
            e(self.st(O[4:6], vOL, K(T * 2 * XT)[0]))
        e(self.take('o_fin', layer))
        self.p2_pre(layer)
        self.publish(sF3p, layer + 1)
        self.stamp(f'opub{layer}')

    def acc_init(self, acc, bias, tmp):
        out = []
        if bias:
            out += [f'ds_read_b128 {tmp.q(c)}, {vQ16} offset:{L_B2 + c * 64}' for c in range(5)]
        for i in range(10):
            out.append(f'v_lshlrev_b32 {acc[2*i]}, 16, {RES[i]}')
            out.append(f'v_and_b32 {acc[2*i+1]}, 0xffff0000, {RES[i]}')
        if bias:
            out += [f'v_pk_add_f32 {acc[2*i:2*i+2]}, {acc[2*i:2*i+2]}, {tmp[2*i:2*i+2]}' for i in range(10)]
        return out

    def reduce_weave(self, mm, b, n, acc, R1, R2, vWr, vRd, bufstride):
        def wr(u):
            return [Ins(f'ds_write_b128 {vWr}, {acc(u).q(c)} offset:{(u & 1) * bufstride + c * 1024}', 'rw') for c in range(5)]

        def rd(u, dst):
            return [f'ds_read_b128 {dst.q(c)}, {vRd[u]} offset:{(u & 1) * bufstride + c * 1024}' for c in range(5)]
        early = n >= 35
        for u in range(3):
            r = b + (u + 1) * n
            mm = weave(mm, wr(u), r + 2, r + n - (12 if early and u == 2 else 3))
            if u < 2:
                mm[r + n - 1] += [wait(lgkm='rw'), 's_barrier']
        r = b + 2 * n
        mm = weave(mm, rd(0, R1), r, r + 5)
        mm = weave(mm, [f'v_add_f32 {acc(3)[i]}, {acc(3)[i]}, {R1[i]}' for i in range(20)], r + 8, r + n - 1)
        mm = weave(mm, rd(1, R1), r + n, r + n + 5)
        fin = [[wait(lgkm='rw'), 's_barrier']] + rd(2, R2)
        last = []
        if early:
            mm = weave(mm, fin, r + 2 * n - 8, r + 2 * n - 2)
        else:
            last = fin
        last += [f'v_pk_add_f32 {acc(3)[2*i:2*i+2]}, {acc(3)[2*i:2*i+2]}, {R1[2*i:2*i+2]}' for i in range(10)]
        return mm, last

    def reduce_addr(self, vWr, vRd, base, stride):
        e = self.e
        e(f's_mul_i32 {sT0}, {sW}, {stride}\ns_add_u32 {sT0}, {sT0}, {base}\nv_add_u32 {vWr}, {sT0}, {vL16}')
        for u in range(3):
            e(f"""s_add_u32 {sT1}, {sW}, {3 - u}
s_and_b32 {sT1}, {sT1}, 3
s_mul_i32 {sT1}, {sT1}, {stride}
s_add_u32 {sT1}, {sT1}, {base}
v_add_u32 {vRd[u]}, {sT1}, {vL16}""")

    def x_finish(self, acc, recv, last, tmp):
        e = self.e
        if last:
            e(f"""v_and_b32 {tmp[0]}, 15, v0
v_mul_u32_u24 {tmp[0]}, 1280, {tmp[0]}
v_add_u32 {tmp[1]}, {tmp[0]}, {vQ16}
v_lshrrev_b32 {tmp[2]}, 1, {vQ16}
v_add_u32 {tmp[0]}, {tmp[0]}, {tmp[2]}""")
        for i in range(10):
            e(f'v_pk_add_f32 {acc[2*i:2*i+2]}, {acc[2*i:2*i+2]}, {recv[2*i:2*i+2]}')
            e(f'v_cvt_pk_bf16_f32 {RES[i]}, {acc[2*i]}, {acc[2*i+1]}')
            if i in (3, 7):
                r = RES[i - 3:i + 1]
                e(self.st(r, tmp[1], sOut, (i >> 2) * 64, '', srd_='s[12:15]') if last else self.st(r, vL16, sXo, (i >> 2) * 1024))
        if last:
            e(self.st(RES[8:10], tmp[0], sOut, 128, '', srd_='s[12:15]'))
            return
        e(self.st(RES[8:10], vX4, sXo, 2048))
        e(f'v_mov_b32 {tmp[2]}, {ONES}')
        for i in range(10):
            e(f'v_dot2_f32_bf16 {tmp[0]}, {RES[i]}, {tmp[2]}, {tmp[0] if i else 0}')
            e(f'v_dot2_f32_bf16 {tmp[1]}, {RES[i]}, {RES[i]}, {tmp[1] if i else 0}')
        e(stat_reduce(tmp[0], tmp[1], tmp[2]))
        e(self.st(tmp[0], vSTs, sSTo, 0))

    def paced(self, mm, loads, n0, first_use, last_use, ring, rate):
        nxt, last = n0, 0
        for i in range(len(mm)):
            while nxt < len(loads) and (nxt < ring or last_use[nxt - ring] <= i) and nxt < n0 + (i + 1) * rate:
                assert first_use[nxt] > i
                mm[i] = list(mm[i]) + (loads[nxt] if isinstance(loads[nxt], list) else [loads[nxt]])
                nxt += 1
                last = i
        assert nxt == len(loads)
        return last

    P2ACC, P2WR, P2RD = V(120, 80), V(240), V(241, 3)

    def p2_pre(self, layer):
        self.reduce_addr(self.P2WR, self.P2RD, L_SCR, 5120)
        self.e(self.acc_init(self.P2ACC.q(3, 20), False, None))
        for u in range(4):
            self.e(f's_add_u32 {(sT0, sT1, sT2, sT3)[u]}, {sOl[u]}, 4096')

    def p2(self, layer):
        e = self.e
        ACC, OF, R1, RECV = self.P2ACC, V(40, 80), V(200, 20), V(220, 20)
        vWr, vRd, TMP = self.P2WR, self.P2RD, V(246, 4)
        acc = lambda u: ACC.q(u, 20)
        e(self.take('p2_pre', layer))
        self.poll(sF3c, 8, layer + 1)
        self.stamp(f'p2_go{layer}')
        lds = []
        for u in range(4):
            for ks in range(5):
                so, off = (sOl[u], ks * 1024) if ks < 4 else ((sT0, sT1, sT2, sT3)[u], 0)
                lds.append(self.ld(OF.q(5 * u + ks), vL16, off, ' sc1', so=so, val=f'o{u}_{ks}'))
        n0 = self.o.get('p2n0', 6)
        e(lds[:n0])
        mm = []
        for u in range(4):
            for ks in range(5):
                for c in range(5):
                    a = acc(u).q(c)
                    mm.append([Ins(f'{M16} {a}, {WOR.q(5 * ks + c)}, {OF.q(5 * u + ks)}, {a if (ks or u == 3) else 0}',
                                   expect=self.x((WOR.q(5 * ks + c), f'wo{ks}_{c}'), (OF.q(5 * u + ks), f'o{u}_{ks}')))])
        last_ld = self.paced(mm, lds, n0, [5 * n for n in range(20)], None, 20, self.o.get('p2rate', 0.25))
        mm, last = self.reduce_weave(mm, 0, 25, acc, R1, RECV, vWr, vRd, 20480)
        mm = weave(mm, self.take('p2_r2', layer), last_ld + 1, 75)
        mm = weave(mm, self.take('p2_r3', layer), 75, 100)
        mm = self.fine(mm, 'p2', layer, (0, 24, 49, 74, 99))
        e(mm)
        e(last)
        self.stamp(f'p2_mm{layer}')
        self.x_finish(acc(3), RECV, False, TMP)
        e(self.take('p2_fin', layer))
        e(f'v_add_u32 {vB2}, {sX3}, {vL16}')
        e(f's_add_u32 {sT0}, {sHo}, {HT}\ns_add_u32 {sT1}, {sHoO}, {HT}\ns_add_u32 {sT2}, {sHoB}, {HT}')
        self.publish(sF4p, layer + 1)
        self.stamp(f'p2_pub{layer}')
        e('s_barrier')
        e(self.take('p2_end', layer))

    def p3(self, layer):
        e = self.e
        ACC = V(40, 56)
        WF = V(96, 32)
        CB = V(128, 16)
        OUT = V(144, 8)
        SC = V(152, 8)
        vLC = CB[15]
        xf = lambda n: V(160, 96).q(n) if n < 24 else X1A.q(n - 24)
        acc = lambda t, T: ACC.q(2 * t + T)
        self.poll(sF4c, 16, layer + 1)
        self.stamp(f'p3_go{layer}')
        xl = [self.ld(xf(2 * ks + T), vB2, T * XT + ks * 1024, ' sc1', val=f'x{2 * ks + T}') for ks in range(20) for T in range(2)]
        n0 = self.o.get('p3n0', 4)
        e(xl[:n0])
        e('s_barrier')
        e(f'v_add_u32 {vB0}, {L_R0}, {vL16}\nv_add_u32 {vB1}, {L_R0 + 61440}, {vL16}')
        passes = [(0, 1, 2, 3), (4, 5), (6,)]
        wseq = [(t, ks) for ps in passes for ks in range(20) for t in ps]
        NW, AHEAD = 8, 6

        def wread(n):
            t, ks = wseq[n]
            return Ins(f'ds_read_b128 {WF.q(n % NW)}, {(vB0, vB1, vB0)[t // 3]} offset:{(t % 3) * 20480 + ks * 1024}', f'wf{n}')
        for n in range(AHEAD):
            e(wread(n))
        for T in range(2):
            e(self.ld(SC.q(T), vL16, T * 1024, ' sc1', so=sST3))
        mm = []
        for n, (t, ks) in enumerate(wseq):
            mf = [Ins(f'{M16} {acc(t, T)}, {WF.q(n % NW)}, {xf(2 * ks + T)}, {acc(t, T) if (ks or t >= 4) else 0}',
                      expect=[(xf(2 * ks + T), f'x{2 * ks + T}')]) for T in range(2)]
            g0 = []
            if n % 2 == 0:
                g0.append(wait(lgkm=f'wf{n + 1}'))
            g0.append(mf[0])
            if n + AHEAD == 80:
                g0 += [wait(vm='w1'), 's_barrier']
            if n + AHEAD == 100:
                g0.append(f'v_add_u32 {vB0}, {L_R0 + 122880}, {vL16}')
            if n + AHEAD < len(wseq):
                g0.append(wread(n + AHEAD))
            mm.append(g0)
            mm.append([mf[1]])
        last_ld = self.paced(mm, xl, n0, [8 * (n // 2) + (n & 1) for n in range(40)], None, 40, self.o.get('p3rate', 0.3))
        mm = weave(mm, self.take('p3_A', layer), last_ld + 1, 146)
        st = []
        for T in range(2):
            L = SC.q(T)
            st.append([f'v_add_f32 {L[0]}, {L[0]}, {L[1]}',
                       f'v_add_f32 {L[2]}, {L[2]}, {L[3]}',
                       f'v_add_f32 {L[2]}, {L[2]}, {L[0]}',
                       f'v_mov_b32 {L[3]}, {L[2]}',
                       f'v_permlane16_swap_b32 {L[2]}, {L[3]}',
                       f'v_add_f32 {L[2]}, {L[2]}, {L[3]}',
                       f'v_mov_b32 {L[3]}, {L[2]}',
                       f'v_permlane32_swap_b32 {L[2]}, {L[3]}'] + self.stats_finish(L[2], L[3], L[0], L[1]) +
                      [f'v_mul_f32 {L[2]}, {L[2]}, {L[0]}'])
        mm = weave(mm, [x for ab in zip(*st) for x in ab], 16, 44)
        for i, t in enumerate((4, 5, 6, 0, 1, 2, 3)):
            cb = CB.q(i & 1, 8)
            ks = 5 + 2 * i
            mm[8 * ks - 3].append(f'ds_read_b128 {cb[0:4]}, {vQ16} offset:{L_C1 + t * 64}')
            mm[8 * ks - 1].append(f'ds_read_b128 {cb[4:8]}, {vQ16} offset:{L_B1 + t * 64}')
            for T in range(2):
                a, sc = acc(t, T), SC.q(T)
                if t >= 4:
                    o1 = [f'v_mul_f32 {a[r]}, {sc[1]}, {cb[r]}' for r in range(4)]
                    b1 = 8 * ks + 4 + 3 * T
                    b2 = b1 + 6
                else:
                    o1 = [f'v_fmac_f32 {a[r]}, {sc[1]}, {cb[r]}' for r in range(4)]
                    b1 = 8 * ks + ((2 * t + T + 4) & 7)
                    if b1 < 8 * ks + 4:
                        b1 += 8 if T == 0 or t != 1 else 8
                    b2 = b1 + 8
                o2 = [f'v_fmac_f32 {a[r]}, {sc[2]}, {cb[4 + r]}' for r in range(4)]
                for b, o in ((b1, o1), (b2, o2)):
                    k = 1 if b % 2 == 0 else 2
                    mm[b] += o[:k]
                    mm[b + 1] += o[k:3]
                    mm[b + 2] += o[3:]

        def epi(tiles):
            out = []
            for T in range(2):
                sc = SC.q(T)
                for i, t in enumerate(tiles):
                    a = acc(t, T)
                    for r in range(4):
                        out.append(f'v_max_f32 {a[r]}, 0, {a[r]}')
                    if len(tiles) == 1:
                        for h in (0, 2):
                            out.append(f'v_pk_mul_f32 {a[h:h+2]}, {a[h:h+2]}, {sc[0:2]} op_sel_hi:[1,0]')
                        for h in (0, 2):
                            out.append(f'v_pk_mul_f32 {a[h:h+2]}, {a[h:h+2]}, {a[h:h+2]}')
                    else:
                        for r in range(4):
                            out.append(f'v_mul_f32 {a[r]}, {a[r]}, {sc[0]}')
                        for r in range(4):
                            out.append(f'v_mul_f32 {a[r]}, {a[r]}, {a[r]}')
                    for h in (0, 2):
                        out.append(f'v_cvt_pk_bf16_f32 {OUT.q(T)[2*i + h//2]}, {a[h]}, {a[h+1]}')
                if tiles[0] < 4:
                    out.append(self.st(OUT.q(T), vL16, (sHo, sT0)[T], (tiles[0] // 2) * 1024, tag='st0'))
                elif tiles[0] == 4:
                    out.append(self.st(OUT.q(T), vL16, (sHoB, sT2)[T], 0))
                else:
                    out.append(self.st(OUT.q(T)[0:2], vL16, (sHoO, sT1)[T], 0))
            return out

        def fill2(mm, ops, a, b):
            k = 0
            need = len(ops) / ((b - a) * 1.5)
            credit = 0.0
            for i in range(a, b):
                credit += need * (1 if i % 2 == 0 else 2)
                while k < len(ops) and k + 1 <= credit + 1e-6:
                    mm[i].append(ops[k])
                    k += 1
            mm[b - 1] += ops[k:]
        mm[163].append('s_barrier')
        fill2(mm, epi((0, 1)) + epi((2, 3)), 164, 242)
        fill2(mm, epi((4, 5)), 243, 280)
        mm[self.o.get('p3pubA', 262)] += self.publish_ins(sF5p, 2 * layer + 1, 'st0')
        mm = weave(mm, self.take('p3_B', layer), 164, 240)
        mm = weave(mm, self.take('p3_C', layer), 240, 280)
        mm = self.fine(mm, 'p3', layer, (0, 40, 80, 120, 160, 200, 240))
        e(mm)
        self.stamp(f'p3_mm{layer}')
        e(epi((6,)))
        e('s_barrier')
        e(self.take('p3_end', layer))

    def p4(self, layer):
        e = self.e
        ACC, HF, WF, RECV = V(40, 80), V(120, 64), V(184, 40), V(224, 20)
        HA = V(244, 4)
        vWr, vRd, TMP = V(248), V(249, 3), V(252, 4)
        vLA = TMP[0]
        acc = lambda u: ACC.q(u, 20)
        for u in range(4):
            e(f'v_add_u32 {HA[u]}, {sHl[u]}, {vL16}')
        e(f'v_add_u32 {vLA}, {sLA}, {vL16}')
        self.poll(sF5c, 8, 2 * layer + 1)
        self.publish(sF5p, 2 * layer + 2)
        self.stamp(f'p4_go{layer}')
        tl = (6, 2, 3, 4, 5, 1, 0)
        hseq = [(u, s) for s in range(7, 14) for u in range(4)] + [(u, s) for u in range(4) for s in tl]
        NH = 16

        def hload(n):
            u, s = hseq[n]
            return self.ld(HF.q(n % NH), HA[u], s * 1024, ' sc1', so=sDum if s == 0 else None, val=f'h{n}')
        hl = [hload(n) for n in range(56)]
        n0 = self.o.get('p4n0', 5)
        e(hl[:n0])

        def wop(s, c):
            return WF.q((s % 2) * 5 + c) if s >= 7 else self.w2reg(s, c, layer)

        def wread(s):
            out = []
            if s == 7:
                out.append(wait(vm='w2a'))
            if s == 11:
                out.append(wait(vm='w2b'))
            for c in range(5):
                b, off = (vLA, (s - 7) * 5120) if s < 11 else (vWr, (s - 11) * 5120)
                out.append(Ins(f'ds_read_b128 {wop(s, c)}, {b} offset:{off + c * 1024}', val=f'w2_{s}_{c}'))
            return [out[:-4]] + out[-4:]
        e(wread(7))
        self.reduce_addr(vWr, vRd, L_R1, 15360)
        e(self.acc_init(acc(3), True, RECV))
        e(self.take('p4_pre', layer))
        mm = []
        for n, (u, s) in enumerate(hseq):
            for c in range(5):
                a = acc(u).q(c)
                mm.append([Ins(f'{M16} {a}, {wop(s, c)}, {HF.q(n % NH)}, {a if (s != 7 or u == 3) else 0}',
                               expect=self.x((wop(s, c), f'w2_{s}_{c}'), (HF.q(n % NH), f'h{n}')))])
        iss, chk = self.lazy_check(f'buffer_load_dword {vB1}, {vB0}, {WSR}, {sF5c} offen sc1', [f'v_cmp_gt_u32 vcc, {2 * layer + 2}, {vB1}'])
        hl[29 - self.o.get('p4chk', 8)] = iss + [hl[29 - self.o.get('p4chk', 8)]]
        hl[29] = chk + [hl[29]]
        last_ld = self.paced(mm, hl, n0, [5 * n for n in range(56)], [5 * n + 4 for n in range(56)], NH, self.o.get('p4rate', 0.23))
        for s in range(8, 14):
            mm = weave(mm, wread(s), (s - 8) * 20 + 5, (s - 8) * 20 + 15)
        mm = weave(mm, self.take('p4_A', layer), 0, 60)
        mm = weave(mm, self.take('p4_B', layer), 60, 130)
        mm, last = self.reduce_weave(mm, 140, 35, acc, WF[0:20], RECV, vWr, vRd, 5120)
        mm = weave(mm, self.take('p4_tail', layer), max(last_ld + 1, 211), 280)
        mm = self.fine(mm, 'p4', layer, (0, 40, 80, 140, 175, 210, 245, 279))
        e(mm)
        e(last)
        self.stamp(f'p4_mm{layer}')
        self.x_finish(acc(3), RECV, layer == 1, V(253, 3))
        if layer == 0:
            rst = []
            if self.o['stash']:
                rst = [Ins(f'ds_write_b128 {vLA}, {STASH.q(i)} offset:{i * 1024}', 'rst') for i in range(20)]
            k = self.o.get('rst0', 5)
            e(rst[:k])
            self.publish(sF1p, 1)
            self.stamp(f'p4_pub{layer}')
            self.p1_pre(1)
            e(rst[k:])
            e(self.take('p4_end', layer))

    def body(self):
        p = self.p
        stop = self.o['stop']
        for layer in range(2):
            if layer:
                self.poll(sF1c, 32, 1)
                self.stamp('p1_poll')
                self.p1_first_loads()
                left = self.p1_main(layer)
                self.p1_epilogue(layer, left)
            done = False
            for name, f in (('p1', self.p1_out), ('p2', self.p2), ('p3', self.p3), ('p4', self.p4)):
                p.comment(f'---- layer {layer} {name}')
                f(layer)
                if stop == (layer, name):
                    done = True
                    break
            if done:
                break
        self.stamp('end')
        self.stamp('RT1')
        self.stamp_flush()
        self.e(f"""s_add_u32 {sEp}, {sEp}, 1
v_mov_b32 {vFlag}, {sEp}
s_or_b32 {sT1}, s2, {sW}
s_mov_b32 {sT0}, {EP}
s_cselect_b32 {sT0}, {OOB}, {sT0}
s_mov_b64 exec, 1""")
        self.e(f'buffer_store_dword {vFlag}, off, {WSR}, {sT0} sc1')
        self.e('s_endpgm')
        self.e(self.ool)
        self.ool = []

    def build(self):
        self.used = set()
        self.p = Prog('h')
        self.startup()
        self.p1_pre(0)
        left = self.p1_main(0)
        self.p1_epilogue(0, left)
        self.e(f's_cmp_lg_u32 {sMode}, 0\ns_cbranch_scc1 slow_body')
        head = self.p.finalize()
        vals, stats = self.p.vals, dict(self.p.stats)
        ns, names = self.nstamp, list(self.stamp_names)
        out = head
        for pre, sc in (('f', ''), ('s', ' sc1')):
            self.p = Prog(pre)
            self.sc = sc
            self.nstamp, self.stamp_names = ns, list(names)
            if pre == 's':
                self.p.label('slow_body')
            self.body()
            out += self.p.finalize(vals)
            if pre == 'f':
                for k in stats:
                    stats[k] += self.p.stats[k]
        out += 'k_done:\n s_endpgm\n'
        if self.o['stop']:
            out += '.fill 16384, 4, 0xbf810000\n'
        elif not self.o.get('now'):
            need = [('WO', 5), ('W1A', 5), ('W1E', 3), ('W1L', 3), ('W2R', 5), ('W2X', 2), ('W2A', 5), ('W2B', 4)]
            for u, n in need:
                for i in range(n):
                    for layer in range(2):
                        assert (u, i, layer) in self.used, (u, i, layer)
        print('kernel:', stats, file=sys.stderr)
        return out


NAME = 'interleave_layers__linear_kernel_hedgehog__dense_activation_squared_relu__prompt_kernel'


def build_file(path, **opt):
    g = Gen(**opt)
    code = g.build()
    hdr = '; @launch grid=(256,1,1) block=(256,1,1) lds=163840\n'
    if opt.get('stamps'):
        hdr += '; stamps: ' + ' '.join(g.stamp_names) + '\n'
    open(path, 'w').write(hdr + '.amdgcn_target "amdgcn-amd-amdhsa--gfx950"\n' + kernel_header(NAME) + code +
                          kernel_footer(NAME, vgpr=512, agpr_offset=256, sgpr=102))


if __name__ == '__main__':
    opt = {}
    for a in sys.argv[2:]:
        k, v = a.split('=', 1)
        opt[k] = eval(v)
    build_file(sys.argv[1], **opt)
```

```python
import re

REG_RE = re.compile(r'(?<![\w.])([vas])(?:\[(\d+):(\d+)\]|(\d+))(?![\w])')
TRANS = ('v_exp_f32', 'v_log_f32', 'v_rcp_f32', 'v_rsq_f32', 'v_sqrt_f32', 'v_sin_f32', 'v_cos_f32')


def regs_of(tok):
    tok = tok.strip()
    out = []
    for m in REG_RE.finditer(tok):
        k = m.group(1)
        if m.group(2) is not None:
            out += [(k, i) for i in range(int(m.group(2)), int(m.group(3)) + 1)]
        else:
            out.append((k, int(m.group(4))))
    for name in ('vcc', 'exec', 'm0'):
        if re.search(r'(?<![\w])' + name + r'(?:_lo|_hi)?(?![\w])', tok):
            out.append((name, 0))
    return out


def split_ops(s):
    ops, depth, cur = [], 0, ''
    for ch in s:
        if ch in '[(':
            depth += 1
        elif ch in '])':
            depth -= 1
        if ch == ',' and depth == 0:
            ops.append(cur.strip())
            cur = ''
        else:
            cur += ch
    if cur.strip():
        ops.append(cur.strip())
    return ops


class Ins:
    __slots__ = ('text', 'op', 'defs', 'uses', 'kind', 'tag', 'ab', 'c', 'passes', 'data', 'extra', 'val', 'need')

    def __init__(self, text, tag=None, val=None, expect=None, need=None):
        self.text = text.strip().replace(' offset:0 ', ' ')
        if self.text.endswith(' offset:0'):
            self.text = self.text[:-9]
        self.tag = tag
        self.need = need
        self.val = val
        self.extra = expect
        parts = self.text.split(None, 1)
        self.op = op = parts[0]
        ops = split_ops(parts[1]) if len(parts) > 1 else []
        if ops:
            last = ops[-1]
            cut = re.search(r'\s+(op_sel|op_sel_hi|neg_lo|neg_hi|offset|offset0|offset1|offen|lds|sc0|sc1|nt|glc|clamp|row_|quad_perm|bound_ctrl|bank_mask|cbsz|abid|blgp|src0_sel|src1_sel|dst_sel|dst_unused)', last)
            if cut:
                ops[-1] = last[:cut.start()]
        R = [regs_of(o) for o in ops]
        flat = lambda L: set(r for x in L for r in x)
        self.ab = set()
        self.c = set()
        self.passes = 0
        self.data = set()
        is_lds = bool(re.search(r'\slds(\s|$)', self.text))
        if op.startswith('v_mfma'):
            self.kind = 'mfma'
            self.defs = flat(R[:1])
            self.ab = flat(R[1:3])
            self.c = flat(R[3:4])
            self.uses = self.ab | self.c
            self.passes = 8 if '32x32' in op else 4
        elif op.startswith('buffer_load') and is_lds:
            self.kind = 'dma'
            self.defs = set()
            self.uses = flat(R) | {('m0', 0)}
        elif op.startswith('buffer_load') or op.startswith('global_load'):
            self.kind = 'vload'
            self.defs = flat(R[:1])
            self.uses = flat(R[1:])
            if 'd16' in op:
                self.uses |= self.defs
        elif op.startswith('buffer_store'):
            self.kind = 'vstore'
            self.defs = set()
            self.uses = flat(R)
            self.data = flat(R[:1])
        elif op.startswith('buffer_atomic'):
            self.kind = 'vstore'
            self.defs = set()
            self.uses = flat(R)
            self.data = flat(R[:1])
            assert ' sc0' not in self.text
        elif op in ('buffer_wbl2', 'buffer_inv'):
            self.kind = 'vstore'
            self.defs = set()
            self.uses = set()
        elif op.startswith('ds_read') or op.startswith('ds_bpermute') or op.startswith('ds_permute') or op.startswith('ds_swizzle'):
            self.kind = 'dsread'
            self.defs = flat(R[:1])
            self.uses = flat(R[1:])
        elif op.startswith('ds_'):
            self.kind = 'dswrite'
            self.defs = set()
            self.uses = flat(R)
            if 'addtid' in op:
                self.uses |= {('m0', 0)}
        elif op.startswith('s_load') or op.startswith('s_memtime') or op.startswith('s_memrealtime') or op.startswith('s_atomic'):
            self.kind = 'smem'
            self.defs = flat(R[:1])
            self.uses = flat(R[1:])
            if op.startswith('s_atomic'):
                self.uses |= self.defs
        elif op.startswith('v_'):
            self.kind = 'valu'
            assert not (op.startswith('v_pk_') and '_f32' in op and re.search(r'op_sel:\[[01],1', self.text)), self.text
            if op.startswith('v_permlane') or op.startswith('v_swap'):
                self.defs = flat(R[:2])
                self.uses = flat(R[:2])
            elif op.startswith('v_fmac') or op.startswith('v_dot2c') or op.startswith('v_pk_fmac'):
                self.defs = flat(R[:1])
                self.uses = flat(R)
            elif op == 'v_nop':
                self.defs = set()
                self.uses = set()
            else:
                self.defs = flat(R[:1])
                self.uses = flat(R[1:])
                assert '_co_' not in op and not op.startswith('v_cmpx'), op
        elif op in ('s_waitcnt', 's_nop', 's_barrier', 's_endpgm', 's_setprio', 's_sleep', 's_branch') or op.startswith('s_cbranch'):
            self.kind = 'ctl'
            self.defs = set()
            self.uses = set()
            if 'vcc' in op:
                self.uses = {('vcc', 0)}
        elif op.startswith('s_cmp') or op.startswith('s_bitcmp'):
            self.kind = 'salu'
            self.defs = set()
            self.uses = flat(R)
        elif op.startswith('s_'):
            self.kind = 'salu'
            self.defs = flat(R[:1])
            self.uses = flat(R[1:])
            if op in ('s_addk_i32', 's_mulk_i32', 's_cmov_b32'):
                self.uses |= self.defs
            if 'saveexec' in op:
                self.defs |= {('exec', 0)}
        else:
            raise ValueError('unknown op: ' + text)

    def states(self):
        if self.op == 's_nop':
            return int(self.text.split()[1], 0) + 1
        return 1


class Pseudo:
    def __init__(self, kind, arg=None):
        self.kind = kind
        self.arg = arg


def ins(x, tag=None):
    if isinstance(x, (Ins, Pseudo)):
        return x
    return Ins(x, tag)


def is_vreg(r):
    return r[0] in 'va' and len(r[0]) == 1


def need_states(p, c):
    n = 0
    pv = p.kind == 'valu'
    if pv:
        pdv = set(r for r in p.defs if is_vreg(r))
        pds = set(r for r in p.defs if not is_vreg(r))
        if pdv:
            if c.kind == 'mfma' and pdv & c.uses:
                n = max(n, 3 if p.op.startswith('v_dot') else 2)
            if c.kind == 'valu':
                if c.op.startswith('v_permlane') and pdv & c.uses:
                    n = max(n, 2)
                if ('row_' in c.text or 'quad_perm' in c.text) and pdv & c.uses:
                    n = max(n, 2)
                if (c.op.startswith('v_readfirstlane') or c.op.startswith('v_readlane')) and pdv & c.uses:
                    n = max(n, 1)
                if p.op in TRANS and pdv & c.uses:
                    n = max(n, 1)
                if ('op_sel' in p.text and not p.op.startswith('v_pk_')) or 'dst_sel' in p.text:
                    if pdv & (c.uses | c.defs):
                        n = max(n, 1)
            if p.op.startswith('v_dot'):
                if c.op == p.op:
                    ops = split_ops(c.text.split(None, 1)[1])
                    ab = set(regs_of(ops[1])) | set(regs_of(ops[2]))
                    if pdv & ab:
                        n = max(n, 3)
                elif pdv & (c.uses | c.defs):
                    n = max(n, 3)
        if pds:
            if c.kind in ('vload', 'vstore', 'dma') and pds & c.uses:
                n = max(n, 5)
            if c.kind == 'valu' and pds & c.uses:
                n = max(n, 4 if c.op.startswith('v_readlane') or c.op.startswith('v_writelane') else 2)
            if c.kind in ('salu', 'smem') and pds & c.uses:
                n = max(n, 1)
    elif p.kind == 'mfma':
        big = 12 if p.passes == 8 else 8
        if c.kind == 'mfma':
            if p.defs & c.ab:
                n = max(n, big)
            if p.defs & c.c and not (p.defs == c.c and p.passes == c.passes):
                n = max(n, big - 2)
            if p.defs & c.defs and not (p.defs & c.c):
                n = max(n, big - 2)
        elif c.kind in ('valu', 'vload', 'vstore', 'dma', 'dsread', 'dswrite'):
            if p.defs & (c.uses | c.defs):
                n = max(n, big)
            if p.c & c.defs:
                n = max(n, 7 if p.passes == 8 else 3)
    elif p.kind == 'vstore':
        if len(p.data) >= 3 and p.data & c.defs:
            n = max(n, 2)
    elif p.kind == 'salu':
        if ('m0', 0) in p.defs and c.kind in ('dma', 'dswrite') and ('m0', 0) in c.uses:
            n = max(n, 1)
    return n


class Prog:
    def __init__(self, prefix=''):
        self.items = []
        self.nlabel = 0
        self.prefix = prefix

    def e(self, x, tag=None):
        if isinstance(x, (list, tuple)):
            for y in x:
                self.e(y, tag)
            return
        if isinstance(x, str) and '\n' in x:
            for y in x.split('\n'):
                if y.strip():
                    self.e(y, tag)
            return
        self.items.append(ins(x, tag))

    def newlabel(self, base='L'):
        self.nlabel += 1
        return f'{self.prefix}{base}_{self.nlabel}'

    def label(self, name):
        self.items.append(Pseudo('label', name))

    def comment(self, t):
        self.items.append(Pseudo('comment', t))

    def finalize(self, vals=None, state=None):
        vals = {} if vals is None else dict(vals)
        self.vals = vals
        out = []
        hist = []
        vq = []
        lq = []
        if state:
            vq, lq, hist = (list(x) for x in state)
        skips = {}
        stats = {'nop': 0, 'wait': 0, 'n': 0}

        def push(i):
            out.append(i)
            hist.append(i)
            stats['n'] += 1
            if len(hist) > 24:
                del hist[0]

        def do_wait(nv, nl):
            nonlocal vq, lq
            parts = []
            if nv is not None:
                nv = min(nv, 63)
                parts.append(f'vmcnt({nv})')
                vq = vq[len(vq) - nv:] if nv else []
            if nl is not None:
                if any(x.kind == 'smem' for x in lq):
                    nl = 0
                nl = min(nl, 15)
                parts.append(f'lgkmcnt({nl})')
                lq = lq[len(lq) - nl:] if nl else []
            if parts and not hoist(nv, nl):
                push(Ins('s_waitcnt ' + ' '.join(parts)))
                stats['wait'] += 1

        def hoist(nv, nl):
            k = len(out) - 1
            dv = dl = 0
            while k >= 0 and len(out) - k <= 6:
                x = out[k]
                if not isinstance(x, Ins) or (x.kind == 'ctl' and x.op not in ('s_nop', 's_waitcnt')) or x.kind == 'smem':
                    return False
                if x.kind == 'mfma':
                    break
                if x.kind in ('vload', 'vstore', 'dma'):
                    dv += 1
                if x.kind in ('dsread', 'dswrite'):
                    dl += 1
                k -= 1
            else:
                return False
            if k == len(out) - 1:
                return False
            if nv is not None:
                nv -= dv
                if nv < 0:
                    return False
            if nl is not None:
                nl -= dl
                if nl < 0:
                    return False
            nxt = out[k + 1]
            if nxt.op == 's_waitcnt':
                m = re.search(r'vmcnt\((\d+)\)', nxt.text)
                if m:
                    nv = int(m.group(1)) if nv is None else min(nv, int(m.group(1)))
                m = re.search(r'lgkmcnt\((\d+)\)', nxt.text)
                if m:
                    nl = int(m.group(1)) if nl is None else min(nl, int(m.group(1)))
            txt = 's_waitcnt' + (f' vmcnt({nv})' if nv is not None else '') + (f' lgkmcnt({nl})' if nl is not None else '')
            if nxt.op == 's_waitcnt':
                nxt.text = txt
            else:
                w = Ins(txt)
                out.insert(k + 1, w)
                hist.insert(hist.index(nxt), w)
                stats['n'] += 1
                stats['wait'] += 1
            return True

        def place_scalar(si):
            k = len(out) - 1
            while k >= 0 and len(out) - k <= 5:
                x = out[k]
                if not isinstance(x, Ins) or x.kind in ('ctl', 'salu', 'smem') or (x.uses | x.defs) & si.defs or x.defs & si.uses:
                    break
                if x.kind == 'mfma':
                    if k + 1 < len(out):
                        hist.insert(hist.index(out[k + 1]), si)
                        out.insert(k + 1, si)
                        stats['n'] += 1
                        return
                    break
                k -= 1
            push(si)

        def last_match(q, pred):
            for k in range(len(q) - 1, -1, -1):
                if pred(q[k]):
                    return len(q) - 1 - k
            return None

        for it in self.items:
            if isinstance(it, Pseudo):
                if it.kind == 'label':
                    out.append(it.arg + ':')
                elif it.kind == 'comment':
                    out.append('; ' + it.arg)
                elif it.kind == 'wait':
                    tv, tl = it.arg
                    nv = nl = None
                    if tv is not None:
                        nv = last_match(vq, (lambda x: True) if tv == '*' else (lambda x: x.tag in tv))
                    if tl is not None:
                        nl = last_match(lq, (lambda x: True) if tl == '*' else (lambda x: x.tag in tl))
                    do_wait(nv, nl)
                elif it.kind == 'skip_begin':
                    skips[it.arg] = (list(vq), list(lq), list(hist))
                elif it.kind == 'skip_end':
                    v0, l0, h0 = skips.pop(it.arg)
                    assert v0[len(v0) - len(vq):] == vq or not vq, 'vm queue not a suffix at ' + it.arg
                    assert l0[len(l0) - len(lq):] == lq or not lq, 'lgkm queue not a suffix at ' + it.arg
                    vq, lq = v0, l0
                    out.append(it.arg + ':')
                    d = 0
                    for p in reversed(h0):
                        assert not (p.kind == 'mfma' and d < 12), 'mfma too close to skip ' + it.arg
                        d += p.states()
                    push(Ins('s_nop 1'))
                elif it.kind == 'drained':
                    vq, lq = [], []
                elif it.kind == 'dropvm':
                    vq = vq[:len(vq) - it.arg]
                elif it.kind == 'assert_empty':
                    assert not vq and not [x for x in lq if x.kind != 'smem'], 'queues not empty at ' + str(it.arg)
                else:
                    raise ValueError(it.kind)
                continue
            i = it
            if i.op == 's_waitcnt':
                m = re.search(r'vmcnt\((\d+)\)', i.text)
                if m:
                    n = int(m.group(1))
                    vq = vq[max(0, len(vq) - n):] if n else []
                m = re.search(r'lgkmcnt\((\d+)\)', i.text)
                if m:
                    n = int(m.group(1))
                    assert n == 0 or not any(x.kind == 'smem' for x in lq)
                    lq = lq[max(0, len(lq) - n):] if n else []
                push(i)
                continue
            for setter in (i.need or []):
                si = Ins(setter, val=setter)
                if any(vals.get(r) != setter for r in si.defs):
                    for r in si.defs:
                        vals[r] = setter
                    place_scalar(si)
            for rr, name in (i.extra or []):
                for r in regs_of(str(rr)):
                    assert vals.get(r) == name, f'{i.text}: {r} holds {vals.get(r)}, expected {name}'
            for r in i.defs:
                vals[r] = i.val
            touch = i.uses | i.defs
            if i.kind == 'vload' and 'd16' in i.op:
                nv = last_match(vq, lambda x: x.defs & (touch - i.defs) or (x.defs & touch and 'd16' not in x.op))
            else:
                nv = last_match(vq, lambda x: x.defs & touch)
            nl = last_match(lq, lambda x: x.defs & touch)
            do_wait(nv, nl)
            need, d = 0, 0
            for p in reversed(hist):
                need = max(need, need_states(p, i) - d)
                d += p.states()
                if d >= 20:
                    break
            if need > 0:
                push(Ins(f's_nop {need - 1}'))
                stats['nop'] += need
            push(i)
            if i.kind in ('vload', 'vstore', 'dma'):
                vq.append(i)
            elif i.kind in ('dsread', 'dswrite', 'smem'):
                lq.append(i)
        self.stats = stats
        self.state = (vq, lq, hist)
        return '\n'.join((' ' + x.text) if isinstance(x, Ins) else x for x in out) + '\n'


def wait(vm=None, lgkm=None):
    f = lambda t: None if t is None else ('*' if t == '*' else (set(t) if isinstance(t, (list, tuple, set)) else {t}))
    return Pseudo('wait', (f(vm), f(lgkm)))


def weave(main, fill, start=0, end=None, per=None):
    main = [list(x) if isinstance(x, (list, tuple)) else [x] for x in main]
    if end is None:
        end = len(main)
    n = end - start
    k = 0
    for m in range(n):
        if per is not None:
            lim = min(len(fill), int((m + 1) * per + 1e-9))
        else:
            lim = ((m + 1) * len(fill) + n - 1) // n
        while k < lim:
            f = fill[k]
            main[start + m] += list(f) if isinstance(f, (list, tuple)) else [f]
            k += 1
    while k < len(fill):
        f = fill[k]
        main[end - 1] += list(f) if isinstance(f, (list, tuple)) else [f]
        k += 1
    return main


def vr(k, base, n=1):
    return f'{k}{base}' if n == 1 else f'{k}[{base}:{base + n - 1}]'


class R:
    def __init__(self, k, base, n):
        self.k, self.base, self.n = k, base, n

    def __getitem__(self, i):
        if isinstance(i, slice):
            a = i.start or 0
            b = self.n if i.stop is None else i.stop
            assert 0 <= a < b <= self.n, (a, b, self.n)
            return R(self.k, self.base + a, b - a)
        assert 0 <= i < self.n, (i, self.n)
        return R(self.k, self.base + i, 1)

    def q(self, i, n=4):
        return self[i * n:(i + 1) * n]

    def __str__(self):
        return vr(self.k, self.base, self.n)

    __repr__ = __str__

    def __format__(self, spec):
        return str(self)


def kernel_footer(name, vgpr=512, agpr_offset=256, sgpr=102):
    return f'''.section .rodata,"a"
.p2align 6
.amdhsa_kernel {name}
  .amdhsa_next_free_vgpr {vgpr}
  .amdhsa_next_free_sgpr {sgpr}
  .amdhsa_accum_offset {agpr_offset}
  .amdhsa_group_segment_fixed_size 0
  .amdhsa_kernarg_size 96
  .amdhsa_user_sgpr_count 2
  .amdhsa_user_sgpr_kernarg_segment_ptr 1
  .amdhsa_system_sgpr_workgroup_id_x 1
  .amdhsa_float_denorm_mode_32 3
.end_amdhsa_kernel
'''


def kernel_header(name):
    return f'''.text
.globl {name}
.p2align 8
.type {name},@function
{name}:
'''


def cost(x):
    if isinstance(x, (list, tuple)):
        return sum(cost(y) for y in x)
    if isinstance(x, Pseudo):
        return 0.0
    t = x.text if isinstance(x, Ins) else x.strip()
    op = t.split()[0]
    if op.startswith('s_'):
        return 0.34
    if op in TRANS or op.startswith('v_permlane'):
        return 2.0
    if op.startswith('ds_write_b128') or op.startswith('buffer_store_dwordx4'):
        return 5.0
    if op.startswith('ds_write_b64') or op.startswith('buffer_store_dwordx2'):
        return 3.0
    if op.startswith('ds_write_b32') or op.startswith('buffer_store'):
        return 2.0
    if op.startswith('v_mfma'):
        return 0.0
    return 1.0


class Gaps:
    def __init__(self, mfmas, cap):
        self.g = [[m] for m in mfmas]
        self.pre = [[] for m in mfmas]
        self.load = [0.0] * len(mfmas)
        self.cap = cap

    def __len__(self):
        return len(self.g)

    def put(self, i, ops):
        ops = list(ops) if isinstance(ops, (list, tuple)) else [ops]
        self.g[i] += ops
        self.load[i] += cost(ops)

    def before(self, i, ops):
        self.pre[i] += list(ops) if isinstance(ops, (list, tuple)) else [ops]

    def flow(self, ops, a, b, spread=True):
        if not ops:
            return a
        assert a < b <= len(self.g), (a, b)
        free = [max(0.0, self.cap - self.load[i]) for i in range(a, b)]
        F = sum(free)
        C = sum(max(cost(o), 0.01) for o in ops)
        k, credit, last = 0, 0.0, a
        for n, i in enumerate(range(a, b)):
            if C > F:
                credit += free[n] + (C - F) / (b - a)
            elif spread:
                credit += free[n] * C / F
            else:
                credit = min(credit, 0.0) + free[n]
            room = free[n]
            while k < len(ops):
                c = max(cost(ops[k]), 0.01)
                if credit < min(c, self.cap) * 0.5 + 1e-9 or (C <= F and room < min(c, self.cap) - 0.35):
                    break
                self.put(i, ops[k])
                credit -= c
                room -= c
                k += 1
                last = i
        while k < len(ops):
            self.put(b - 1, ops[k])
            k += 1
            last = b - 1
        return last

    def paced(self, loads, n0, first_use, last_use, ring, rate):
        nxt, last = n0, 0
        for i in range(len(self.g)):
            while nxt < len(loads) and (nxt < ring or last_use[nxt - ring] <= i) and nxt < n0 + (i + 1) * rate:
                assert first_use[nxt] > i, (nxt, i)
                self.put(i, loads[nxt])
                nxt += 1
                last = i
        assert nxt == len(loads)
        return last

    def overflow(self):
        return sum(max(0.0, l - self.cap) for l in self.load)

    def emit(self):
        return [p + g for p, g in zip(self.pre, self.g)]
```

```python
import sys
from asmlib import *
from layout import *
from prepass import stat_reduce, wq_colbyte_tables, ONES

V = lambda b, n=1: R('v', b, n)
A = lambda b, n=1: R('a', b, n)
S = lambda b, n=1: R('s', b, n)
WSR = 's[8:11]'
M16 = 'v_mfma_f32_16x16x32_bf16'
M32 = 'v_mfma_f32_32x32x16_bf16'
PS = 4224
IMG = L_SCR + 8 * PS
LOG2E = '0x3fb8aa3b'
SPIN_LIMIT = 1 << 19

sEp, sMode = S(3), S(87)
sG, sJ, sW, sTB, sCS, sTH, sFS = (S(i) for i in range(20, 27))
sW1K, sW4K, sSpin, sT0, sT1, sT2, sT3 = (S(i) for i in range(27, 34))
sWQ, sW1, sW1O, sW2, sDum, sXo, sSTo, sHo, sHoO, sKVp = (S(i) for i in range(34, 44))
sF1p, sF1c, sF3p, sF3c, sF4p, sF4c, sF5p, sF5c = (S(i) for i in range(44, 52))
sOl = S(52, 4)
sHl = S(56, 4)
sX3, sST3, sWO, sOut = (S(i) for i in range(60, 64))
KBASE = 64
sW1B = S(64)
sLA, sLB, sHoB, sD0, sD1 = (S(i) for i in range(82, 87))
sTSa = S(88, 2)
sTSb = S(90, 2)
sUd, sUc, sUd2, sRB = S(4), S(5), S(6), S(7)
sFA, sFB = S(100), S(101)


def K(off):
    i, o = divmod(off, 4096)
    assert i <= 17
    return ('0' if i == 0 else f's{KBASE + i}'), o


vL16, vT16, vW4, vXP1, vSP1, vOA, vOL, vX4, vSTs, vHH16, vQ16 = (V(i) for i in range(1, 12))
vPW, vVW, vBW, vTA, vTB0, vTB1, vKVp, vKVg, vIW, vIR, vL4 = (V(i) for i in range(12, 23))
vOne, vTS, vB0, vB1, vFlag = (V(i) for i in range(23, 28))
RES = V(28, 10)
vB2, vB3 = V(38), V(39)
W2K = A(0, 100)
X1A = A(100, 64)
WPH = A(164, 12)
STASH = A(176, 80)


def wo_reg(i):
    return X1A.q(i) if i < 16 else (V(104, 32).q(i - 16) if i < 24 else V(216, 4))


def lagzip(a, b, lag):
    out = list(a[:lag])
    a = a[lag:]
    for i in range(max(len(a), len(b))):
        out += b[i:i + 1] + a[i:i + 1]
    return out


def cvt(d, s):
    return [f'v_cvt_pk_bf16_f32 {d[i]}, {s[2*i]}, {s[2*i+1]}' for i in range(d.n)]


def lines(t):
    return [x for x in t.split('\n') if x.strip()]


UNITS = (dict(WO=25, W1A=20, W1E=9, W1L=6, W2K=25, W2X=15, W2A=20, W2B=10), dict(WO=25, W1A=20, W1L=6, W2X=5, W2A=20))
FIRST_SLOT = dict(WO='p1_a', W1E='p1_a', W1L='p2_end', W2K='p1_a', W2X='p3_end', W2A='p3_B', W2B='p3_end')
LAST_SLOT = (dict(WO='p2_pre', W1A='p2_end', W1E='p3_A', W1L='p3_A', W2K='p4_B', W2X='p4_B', W2A='p3_end', W2B='p4_A'),
             dict(WO='p2_pre', W1A='p2_end', W1L='p3_A', W2X='p4_B', W2A='p4_A'))
DEFAULT_SCHED = ({
    'p1_tail': [('WO', 0, 16)],
    'kepi': [('W1A', 0, 8)],
    'qepi': [('WO', 16, 25)],
    'img': [('W1A', 8, 14)],
    'p2_r2': [('W1A', 14, 20)],
    'p3_A': [('W1L', 0, 6), ('W1E', 0, 9)],
    'p3_B': [('W2A', 0, 20)],
    'p3_C': [('W2K', 0, 10)],
    'p4_A': [('W2B', 0, 10), ('W2X', 0, 10)],
    'p4_B': [('W2K', 10, 25), ('W2X', 10, 15)],
}, {
    'p1_tail': [('WO', 0, 16)],
    'kepi': [('W1A', 0, 8)],
    'qepi': [('WO', 16, 25)],
    'img': [('W1A', 8, 14)],
    'p2_r2': [('W1A', 14, 20)],
    'p3_A': [('W1L', 0, 6)],
    'p3_B': [('W2A', 0, 20)],
    'p4_A': [('W2X', 0, 5)],
})


class Base:
    def __init__(self, **opt):
        self.o = dict(stamps=0, stop=None, xdepth=(10, 8), sched=None, lag=14, force=None, nt=())
        self.o.update(opt)
        self.nstamp = 0
        self.stamp_names = []
        self.sc = ''
        sc = self.o['sched'] or DEFAULT_SCHED
        self.sched = sc if isinstance(sc, (list, tuple)) else (sc, sc)
        self.ool = []

    def e(self, x, tag=None):
        self.p.e(x, tag)

    def srd(self, s, lo, nbytes):
        if lo != s:
            self.e(f's_mov_b32 s{s}, s{lo}\ns_mov_b32 s{s+1}, s{lo+1}')
        self.e(f's_mov_b32 s{s+2}, {nbytes}\ns_mov_b32 s{s+3}, 0x20000')

    def stamp_ins(self, name):
        if not self.o['stamps']:
            return []
        i = self.nstamp
        assert i < 64
        cur, prev = (sTSa, sTSb) if i & 1 == 0 else (sTSb, sTSa)
        out = []
        if i:
            out.append(f'v_writelane_b32 {vTS}, {prev[0]}, {i - 1}')
        out.append(f's_mem{"real" if name.startswith("RT") else ""}time {cur}')
        self.stamp_names.append(name)
        self.nstamp += 1
        return out

    def stamp(self, name):
        self.e(self.stamp_ins(name))

    def fine(self, G, ph, layer, idx):
        if self.o['stamps'] == 2 + (1 - layer):
            for i in idx:
                G.put(i, self.stamp_ins(f'{ph}@{i}'))
        if self.o.get('verbose') and self.sc == '':
            print(ph, layer, 'overflow', round(G.overflow(), 1), file=sys.stderr)

    def stamp_flush(self):
        if not self.o['stamps']:
            return
        i = self.nstamp
        prev = sTSb if i & 1 == 0 else sTSa
        self.e(f'v_writelane_b32 {vTS}, {prev[0]}, {i - 1}')
        self.e(f'''s_lshl_b32 {sT0}, s2, 10
s_lshl_b32 {sT1}, {sW}, 8
s_add_u32 {sT0}, {sT0}, {sT1}
s_add_u32 {sT0}, {sT0}, {TS}''')
        self.e(f'buffer_store_dword {vTS}, {vL4}, {WSR}, {sT0} offen')

    def ld(self, dst, vaddr, off, fl='', so=None, tag=None, val=None):
        op = {1: 'dword', 2: 'dwordx2', 4: 'dwordx4'}[dst.n]
        if so is None:
            so, o = K(off)
        else:
            o = off
        assert 0 <= o < 4096
        return Ins(f'buffer_load_{op} {dst}, {vaddr}, {WSR}, {so} offen offset:{o}{fl}', tag, val)

    def st(self, src, vaddr, so, off=0, fl=None, tag='st', srd_=WSR):
        op = {1: 'dword', 2: 'dwordx2', 4: 'dwordx4'}[src.n]
        if fl is None:
            fl = self.sc
        assert 0 <= off < 4096
        return Ins(f'buffer_store_{op} {src}, {vaddr}, {srd_}, {so} offen offset:{off}{fl}', tag)

    def dma(self, smbase, lds_off, vaddr, sg, g_off, n, tag, fl=None):
        if fl is None:
            fl = self.wfl(tag)
        need = [f's_add_u32 m0, {smbase}, {lds_off}', f's_add_u32 {sD0}, {sg}, {g_off}']
        return [Ins(f'buffer_load_dwordx4 {vaddr}, {WSR}, {sD0} offen offset:{i * 1024}{fl} lds', tag, need=need) for i in range(n)]

    def wfl(self, tag):
        return ' sc1 nt' if tag[:2] in self.o.get('nt', ()) else ' sc1'

    def spin_tail(self, L):
        return lines(f's_add_u32 {sSpin}, {sSpin}, 1\ns_cmp_lt_u32 {sSpin}, {SPIN_LIMIT}\ns_cbranch_scc1 {L}')

    def poll(self, so, n, val):
        p = self.p
        L, D = p.newlabel('spin'), p.newlabel('ok')
        self.e(f'v_and_b32 {vB0}, {(n - 1) * 4}, {vL4}')
        p.label(L)
        self.e(f'buffer_load_dword {vB1}, {vB0}, {WSR}, {so} offen sc1')
        self.e('s_waitcnt vmcnt(0)')
        self.e(f'v_cmp_gt_u32 vcc, {val}, {vB1}')
        self.e(f's_cbranch_vccz {D}')
        self.e(self.spin_tail(L))
        p.label(D)

    def lazy_check(self, load, test):
        p = self.p
        L, B = p.newlabel('retry'), p.newlabel('back')
        self.ool += [Pseudo('label', L), Pseudo('drained'), Ins(load), Ins('s_waitcnt vmcnt(0)')] + [Ins(t) for t in test]
        self.ool += [Ins(f's_cbranch_vccz {B}')] + [Ins(t) for t in self.spin_tail(L)] + [Ins(f's_branch {B}')]
        return [load], list(test) + [f's_cbranch_vccnz {L}', Pseudo('label', B)]

    def publish_ins(self, so, val, tag='st'):
        return [f'v_mov_b32 {vFlag}, {val}', wait(vm=tag), 's_mov_b64 exec, 1',
                Ins(f'buffer_store_dword {vFlag}, off, {WSR}, {so}{self.sc}', 'flag'), 's_mov_b64 exec, -1']

    def publish(self, so, val):
        self.e(self.publish_ins(so, val))

    def w2reg(self, ls, c, layer):
        if ls < 5:
            return W2K.q(ls * 5 + c)
        if ls == 5 or (ls < 8 and layer == 0):
            return X1A.q((ls - 5) * 5 + c)
        if ls >= 11 or (ls == 10 and layer == 1):
            return STASH.q(((ls - 11) % 4) * 5 + c)
        return None

    def unit(self, name, layer):
        flat = lambda L: [x for b in L for x in b]
        if name == 'WO':
            return [self.ld(wo_reg(i), vB2, i * 1024, self.wfl('wo'), tag='wo', val=f'wo{i // 5}_{i % 5}') for i in range(25)]
        if name == 'W1A':
            return flat(self.dma(sW4K, L_R0 + b * 16384, vW4, sW1, b * 16384, 4, 'w1') for b in range(5))
        if name == 'W1E':
            return flat([self.dma(sW4K, L_T4 + 8192, vW4, sW1B, 8192, 4, 'w1'), self.dma(sW4K, L_T4 + 24576, vW4, sW1B, 24576, 4, 'w1'),
                         self.dma(sW1K, L_T4 + 4096, vT16, sW1B, 4096, 1, 'w1')])
        if name == 'W1L':
            return flat([self.dma(sW1K, L_T4, vT16, sW1B, 0, 1, 'w1'), self.dma(sW4K, L_T6, vW4, sW1O, 0, 4, 'w1'),
                         self.dma(sW1K, L_T6 + 16384, vT16, sW1O, 16384, 1, 'w1')])
        if name in ('W2K', 'W2X'):
            out = []
            for ls in ((2, 3, 4, 1, 0) if name == 'W2K' else ((6, 7, 5) if layer == 0 else (5,))):
                for c in range(5):
                    kw = dict(tag='w2', val=f'w2_{ls}_{c}')
                    if ls == 0:
                        x = self.ld(self.w2reg(ls, c, layer), vB3, c * 1024 if c < 4 else 0, self.wfl('w2'), so=sDum if c < 4 else sD1, **kw)
                        if c == 4:
                            x.need = [f's_add_u32 {sD1}, {sDum}, 4096']
                        out.append(x)
                    else:
                        out.append(self.ld(self.w2reg(ls, c, layer), vB3, ls * 5120 + c * 1024, self.wfl('w2'), **kw))
            return out
        if name == 'W2A':
            first = 10 if layer == 0 else 6
            return flat(self.dma(sW4K, L_R0 + b * 16384, vL16, sW2, first * 5120 + b * 4096, 4, f'w2a{b}') for b in range(5))
        if name == 'W2B':
            return flat(self.dma(sLB, b * 4096, vL16, sW2, 8 * 5120 + b * 4096, 4 if b < 2 else 2, 'w2b') for b in range(3))
        raise ValueError(name)

    def wq_piece(self, c):
        if self.o.get('now') or c >= 20:
            return []
        return self.dma(sW1K, L_R0 + c * 4096, vT16, sWQ, c * 4096, 1, f'wq{c}')

    def take(self, slot, layer):
        out = []
        self.slots.append((slot, layer))
        if self.o.get('now'):
            return out
        for u, a, b in self.sched[layer].get(slot, []):
            for i, x in enumerate(self.unit(u, layer)[a:b]):
                first = FIRST_SLOT[u] if u != 'W1A' else f'p1_c{(a + i) // 4}'
                if u == 'WO' and a + i >= 16:
                    first = 'p1_c4'
                if layer == 0 and first in ('p1_c0', 'p1_c1', 'p1_c2', 'p1_c3', 'p1_a'):
                    first = 'p1_tail'
                assert (first, layer) in self.slots, (u, a + i, slot, first)
                assert (LAST_SLOT[layer][u], layer) not in self.slots[:-1], (u, slot)
                assert (u, a + i, layer) not in self.used
                self.used.add((u, a + i, layer))
                out.append(x)
        return out

    def x(self, *pairs):
        return None if self.o.get('now') else list(pairs)
```

```python
from kern2_a import *

LX, LQ, LU, LP = 2048, 14336, 26624, 47104


class Start(Base):
    def startup(self):
        e, p = self.e, self.p
        t = [V(40 + i) for i in range(24)]
        vLane, vTok, vQ, vHH, vT32 = t[0], t[1], t[2], t[3], t[4]
        vR, vC = t[12], t[13]
        RN = ' nt' if self.o.get('rawnt', 1) else ''
        pX, pWq, pPhi, pWo, pW1, pB1, pW2, pB2 = 64, 66, 68, 70, 72, 74, 76, 78
        e('s_cmp_ge_u32 s2, 256\ns_cbranch_scc1 k_done')
        self.stamp('start')
        self.stamp('RT0')
        e("""s_load_dwordx8 s[64:71], s[0:1], 0
s_load_dwordx2 s[8:9], s[0:1], 88
s_load_dwordx8 s[72:79], s[0:1], 40
s_load_dwordx2 s[12:13], s[0:1], 72""")
        e(f"""s_getpc_b64 s[4:5]
s_lshr_b32 {sJ}, s2, 3
s_and_b32 {sG}, s2, 7
v_lshrrev_b32 {t[5]}, 6, v0
v_and_b32 {vLane}, 63, v0
v_and_b32 {vC}, 3, v0
v_readfirstlane_b32 {sW}, {t[5]}
s_lshl_b32 {sT0}, {sJ}, 11
s_add_u32 s4, s4, {sT0}
s_addc_u32 s5, s5, 0
v_lshl_add_u32 {t[6]}, {t[5]}, 2, {vC}
v_lshlrev_b32 {t[6]}, 7, {t[6]}
v_mov_b32 {t[7]}, 0
v_lshl_add_u64 v[46:47], v[46:47], 0, s[4:5]
global_load_dword {t[23]}, v[46:47], off
v_lshlrev_b32 {vT16}, 4, v0
v_lshlrev_b32 {vL16}, 4, {vLane}
s_lshl_b32 {sW1K}, {sW}, 10
s_lshl_b32 {sD1}, {sG}, 5
s_add_u32 {sD1}, {sD1}, {sJ}
s_mul_i32 {sT0}, {sD1}, 10240
s_mul_i32 {sT1}, {sG}, {80 * 3840}
s_mul_i32 {sT2}, {sJ}, 40
s_and_b32 {sT2}, {sT2}, 0xfffffff0
s_add_u32 {sT1}, {sT1}, {sT2}
s_mov_b32 {sT3}, {(1 << 32) // 3 + 1}""")
        for i in range(3):
            e(f"""v_add_u32 {t[5]}, {i * 256}, v0
v_mul_hi_u32 {t[6]}, {t[5]}, {sT3}
v_mul_u32_u24 {t[6]}, {1280 - 48}, {t[6]}
v_lshl_add_u32 {t[14 + i]}, {t[5]}, 4, {t[6]}""")
        e(wait(lgkm='*'))
        if self.o['stamps'] == 4:
            self.stamp('a_karg')
        self.srd(16, pX, 2048 * 1280)
        self.srd(4, pWq, 640 * 3840)
        for i in range(3):
            e(f's_add_u32 m0, {sW1K}, {LX + i * 4096}')
            e(f'buffer_load_dwordx4 {vT16}, s[16:19], {sT0} offen{RN} lds', 'x')
            e(f's_add_u32 m0, {sW1K}, {LQ + i * 4096}')
            e(f's_add_u32 {sT0}, {sT0}, 4096')
            e(f'buffer_load_dwordx4 {t[14 + i]}, s[4:7], {sT1} offen{RN} lds', 'x')
        if self.o['stamps'] == 4:
            self.stamp('a_xiss')
        self.srd(16, pPhi, 32 * 800)
        e(f's_mul_i32 {sT0}, {sJ}, 800\ns_mov_b32 m0, {LP}')
        e(f'buffer_load_dwordx4 {vL16}, s[16:19], {sT0} offen lds', 'x')
        self.srd(16, pB1, 1728 * 2)
        self.srd(96, pB2, 640 * 2)
        self.srd(8, 8, WS_BYTES)
        self.srd(12, 12, 2048 * 1280)
        e(f"""v_lshrrev_b32 {vQ}, 4, {vLane}
v_bfe_u32 {vR}, {vLane}, 2, 2
v_lshl_add_u32 {t[11]}, {vQ}, 3, {vR}""")
        e(f's_add_u32 s80, s8, {EP}\ns_addc_u32 s81, s9, 0')
        e(f's_load_dword {sEp}, s[80:81], 0')
        e(f"""v_and_b32 {vTok}, 15, {vLane}
v_lshrrev_b32 {vHH}, 5, {vLane}
v_and_b32 {vT32}, 31, {vLane}
v_lshlrev_b32 {vL4}, 2, {vLane}
s_mov_b32 {sSpin}, 0""")
        e(f"""s_lshl_b32 {sW4K}, {sW}, 12
v_add_u32 {vW4}, {sW4K}, {vL16}
v_lshlrev_b32 {vHH16}, 4, {vHH}
v_lshlrev_b32 {vQ16}, 4, {vQ}
s_lshr_b32 {sTB}, {sJ}, 3
s_and_b32 {sCS}, {sJ}, 7
s_lshr_b32 {sTH}, {sJ}, 4
s_and_b32 {sFS}, {sJ}, 15""")
        e(f"""s_lshr_b32 {sT2}, {sFS}, 2
s_mul_i32 {sT3}, {sT2}, 13
s_min_u32 {sT2}, {sT2}, 1
s_add_u32 {sT3}, {sT3}, {sT2}
s_and_b32 {sT2}, {sFS}, 3
s_add_u32 {sD0}, {sT3}, {sT2}
s_add_u32 {sT0}, {sD0}, {sT2}
s_add_u32 {sT0}, {sT0}, 6
s_add_u32 {sD0}, {sD0}, 2
s_xor_b32 {sT1}, {sT2}, 2
s_lshl_b32 {sT3}, {sT3}, 1
s_add_u32 {sT1}, {sT1}, {sT3}
s_and_b32 {sT2}, {sFS}, 10
s_cmp_eq_u32 {sT2}, 10
s_cselect_b32 {sT1}, 255, {sT1}""")
        for f in range(16):
            b0, b2, od, lh = p3_blocks(f)
            kb = (f >> 2) * 13 + min(f >> 2, 1)
            assert b0 == kb + 2 * (f & 3) + 6 and b2 == kb + (f & 3) + 2
            assert (od is None) == ((f & 10) == 10) and (od is None or 2 * od + lh == 2 * kb + ((f & 3) ^ 2))
        BB = self.BB
        e(f"""v_lshrrev_b32 {t[5]}, 2, {vT32}
s_lshl_b32 {sT2}, {sT0}, 1
v_add_u32 {t[6]}, {sT2}, {t[5]}
s_lshl_b32 {sT2}, {sD0}, 1
s_sub_u32 {sT2}, {sT2}, 4
v_add_u32 {t[7]}, {sT2}, {t[5]}
v_cmp_gt_u32 vcc, 4, {t[5]}
v_cndmask_b32 {t[6]}, {t[7]}, {t[6]}, vcc
v_mov_b32 {t[7]}, {sT1}
v_cmp_gt_u32 vcc, 6, {t[5]}
v_cndmask_b32 {t[6]}, {t[7]}, {t[6]}, vcc
v_and_b32 {t[7]}, 3, {vLane}
v_lshrrev_b32 {t[9]}, 1, {t[6]}
v_lshlrev_b32 {t[9]}, 6, {t[9]}
v_lshl_add_u32 {t[9]}, {t[7]}, 4, {t[9]}
v_and_b32 {t[10]}, 1, {t[6]}
v_lshl_add_u32 {t[9]}, {t[10]}, 3, {t[9]}""")
        e(f'buffer_load_dwordx2 {BB[0:2]}, {t[9]}, s[16:19], 0 offen')
        e(f"""v_lshlrev_b32 {t[8]}, 6, {t[6]}
v_lshl_add_u32 {t[8]}, {t[7]}, 4, {t[8]}
v_mul_u32_u24 {t[9]}, {108 * 64}, {vHH}
v_add_u32 {t[8]}, {t[8]}, {t[9]}
v_add_u32 {t[8]}, {CS1}, {t[8]}
v_mov_b32 {t[9]}, {OOB}
v_cmp_gt_u32 vcc, 108, {t[6]}
v_cndmask_b32 {self.vC1a}, {t[9]}, {t[8]}, vcc""")
        e(f"""v_lshrrev_b32 {t[9]}, 1, {t[5]}
v_lshlrev_b32 {t[9]}, 6, {t[9]}
v_and_b32 {t[10]}, 1, {t[5]}
v_lshl_add_u32 {t[9]}, {t[10]}, 3, {t[9]}
v_lshl_add_u32 {t[10]}, {t[7]}, 4, {t[9]}
v_lshl_add_u32 {t[9]}, {t[7]}, 3, {t[9]}
v_cmp_gt_u32 vcc, 4, {t[5]}
v_cndmask_b32 {t[9]}, {t[9]}, {t[10]}, vcc
s_mul_i32 {sT2}, {sCS}, 160""")
        e(f'buffer_load_dwordx2 {BB[2:4]}, {t[9]}, s[96:99], {sT2} offen')
        e(f"""s_mul_i32 {sW1}, {sT0}, 40960
s_add_u32 {sW1}, {sW1}, {W1P}
s_mul_i32 {sW1B}, {sD0}, 40960
s_add_u32 {sW1B}, {sW1B}, {W1P}
s_mul_i32 {sW1O}, {sT1}, 20480
s_add_u32 {sW1O}, {sW1O}, {W1P}
s_lshl_b32 {sT2}, {sG}, 4
s_lshl_b32 {sT3}, {sTH}, 3
s_add_u32 {sT2}, {sT2}, {sT3}
s_lshl_b32 {sT3}, {sW}, 1
s_add_u32 {sT2}, {sT2}, {sT3}
s_mul_i32 {sX3}, {sT2}, {XT}
s_lshl_b32 {sST3}, {sT2}, 10
s_add_u32 {sST3}, {sST3}, {ST}
s_mul_i32 {sT2}, {sT2}, {HT}
s_add_u32 {sT2}, {sT2}, {HB}
s_lshl_b32 {sT3}, {sT0}, 10
s_add_u32 {sHo}, {sT2}, {sT3}
s_lshl_b32 {sT3}, {sD0}, 10
s_add_u32 {sHoB}, {sT2}, {sT3}
s_lshr_b32 {sT3}, {sT1}, 1
s_lshl_b32 {sT3}, {sT3}, 10
s_add_u32 {sHoO}, {sT2}, {sT3}
s_and_b32 {sT3}, {sT1}, 1
s_lshl_b32 {sT3}, {sT3}, 3
s_add_u32 {sHoO}, {sHoO}, {sT3}
s_cmp_eq_u32 {sT1}, 255
s_cselect_b32 {sW1O}, {OOB}, {sW1O}
s_cselect_b32 {sHoO}, {OOB}, {sHoO}""")
        XF, XM, QF = V(64, 12), V(76, 4), V(80, 12)
        vXr, vXw, vXs, vQr, vQc = t[16], t[17], t[18], t[19], t[20]
        sXd, sXd2, sXs, sMk, sQd, sQd2, sQc, sQn = sOl[0], sOl[1], sOl[2], sOl[3], sHl[0], sHl[1], sHl[2], sHl[3]
        tabs = wq_colbyte_tables()
        e(f"""v_and_b32 {t[5]}, 7, v0
v_lshrrev_b32 {t[6]}, 3, v0
v_mul_u32_u24 {vXr}, 1280, {t[5]}
v_lshl_add_u32 {vXr}, {t[6]}, 4, {vXr}
v_add_u32 {vXr}, {LX}, {vXr}
v_lshlrev_b32 {vXw}, 8, {t[6]}
v_lshl_add_u32 {vXw}, {t[5]}, 4, {vXw}
v_lshlrev_b32 {vXs}, 9, {vHH}
v_lshl_add_u32 {vXs}, {t[5]}, 4, {vXs}
v_bfe_u32 {t[6]}, {vLane}, 3, 1
v_lshl_add_u32 {vXs}, {t[6]}, 2, {vXs}
s_lshr_b32 {sT0}, {sD1}, 1
s_and_b32 {sT1}, {sD1}, 1
s_lshl_b32 {sT1}, {sT1}, 7
s_mul_i32 {sXd}, {sT0}, {XT}
s_add_u32 {sXd}, {sXd}, {sT1}
v_add_u32 {vXw}, {sXd}, {vXw}
s_lshl_b32 {sXs}, {sT0}, 10
s_add_u32 {sXs}, {sXs}, {sT1}
s_lshr_b32 {sT2}, {sW}, 1
s_and_b32 {sT3}, {sW}, 1
s_lshl_b32 {sT0}, {sT2}, 8
s_add_u32 {sXs}, {sXs}, {sT0}
s_lshl_b32 {sT0}, {sT3}, 3
s_add_u32 {sXs}, {sXs}, {sT0}
s_add_u32 {sXs}, {sXs}, {ST}
s_mul_i32 {sWQ}, {sJ}, 81920
s_add_u32 {sWQ}, {sWQ}, {WQ}
s_mul_i32 {sT0}, {sG}, 10240
s_add_u32 {sQd}, {sWQ}, {sT0}
s_mul_i32 {sT0}, {sT2}, 6144
s_add_u32 {sQd}, {sQd}, {sT0}
s_lshl_b32 {sT0}, {sT3}, 10
s_add_u32 {sQd}, {sQd}, {sT0}
s_add_u32 {sQd2}, {sQd}, 4096
s_mov_b32 {sXd2}, 16384
s_cmp_ge_u32 {sW}, 2
s_cselect_b32 {sXd2}, {OOB}, {sXd2}
s_cselect_b32 {sQd2}, {OOB}, {sQd2}
s_cselect_b32 {sMk}, 0, -1
s_cselect_b32 {sDum}, {OOB}, 0
s_lshl_b32 {sQc}, {sJ}, 12
s_lshl_b32 {sT0}, {sG}, 9
s_add_u32 {sQc}, {sQc}, {sT0}
s_lshl_b32 {sT0}, {sW}, 7
s_add_u32 {sQc}, {sQc}, {sT0}
s_add_u32 {sQc}, {sQc}, {CSQ}
s_cmp_eq_u32 {sT3}, 1
s_mov_b32 {sT0}, {tabs[1, 0][0]}
s_cselect_b32 {sT0}, {sT0}, {tabs[0, 0][0]}
s_mov_b32 {sT1}, {tabs[1, 0][1]}
s_cselect_b32 {sT1}, {sT1}, {tabs[0, 0][1]}
s_cselect_b32 {sQn}, 28, 32
v_mov_b32 {t[5]}, {sT0}
v_mov_b32 {t[6]}, {sT1}
v_and_b32 {t[7]}, 1, {vQ}
v_cmp_eq_u32 vcc, 1, {t[7]}
v_cndmask_b32 {t[5]}, {t[5]}, {t[6]}, vcc
v_lshlrev_b32 {t[6]}, 3, {vC}
v_bfe_u32 {t[5]}, {t[5]}, {t[6]}, 8
v_lshl_add_u32 {t[6]}, {vHH}, 3, {vR}
v_mul_u32_u24 {t[6]}, 144, {t[6]}
s_mul_i32 {sT0}, {sT2}, {48 * 144}
s_and_b32 {sT1}, {sJ}, 1
s_lshl_b32 {sT1}, {sT1}, 3
s_add_u32 {sT0}, {sT0}, {sT1}
s_add_u32 {sT0}, {sT0}, {LQ}
v_add3_u32 {vQr}, {t[5]}, {t[6]}, {sT0}
v_lshlrev_b32 {vQc}, 2, {vT32}
v_cmp_gt_u32 vcc, {sQn}, {vT32}""")
        vU, vU4 = t[21], t[22]
        UAD = V(104, 5)
        sK, sH = sF3p, sF3c
        e('s_cmp_ge_u32 s2, 108\ns_cbranch_scc1 st_w2')
        self.srd(92, pW1, 640 * 3456)
        e(f"""s_mul_i32 {sK}, s2, {(1 << 16) // 27 + 1}
s_lshr_b32 {sK}, {sK}, 16
s_mul_i32 {sH}, {sK}, 27
s_sub_u32 {sH}, s2, {sH}
s_mul_i32 {sT0}, {sK}, {160 * 3456}
s_lshl_b32 {sT1}, {sH}, 7
s_add_u32 {sT0}, {sT0}, {sT1}
v_lshrrev_b32 {t[5]}, 3, v0
v_and_b32 {t[6]}, 7, v0
v_mul_u32_u24 {t[5]}, 3456, {t[5]}
v_lshl_add_u32 {t[5]}, {t[6]}, 4, {t[5]}""")
        for i in range(5):
            e(f'v_add_u32 {UAD[i]}, {sT0}, {t[5]}')
            e(f's_add_u32 {sT0}, {sT0}, {32 * 3456}')
        e(f"""v_lshlrev_b32 {vU}, 7, {t[11]}
v_lshl_add_u32 {vU}, {vC}, 4, {vU}
s_lshr_b32 {sT0}, {sW}, 1
s_lshl_b32 {sT0}, {sT0}, 6
s_and_b32 {sT1}, {sW}, 1
s_lshl_b32 {sT1}, {sT1}, 3
s_add_u32 {sT0}, {sT0}, {sT1}
s_add_u32 {sT0}, {sT0}, {LU}
v_add_u32 {vU}, {sT0}, {vU}
s_lshl_b32 {sT1}, {sH}, 2
s_add_u32 {sT1}, {sT1}, {sW}
s_mul_i32 {sUd}, {sT1}, 20480
s_mul_i32 {sT0}, {sK}, 5120
s_add_u32 {sUd}, {sUd}, {sT0}
s_add_u32 {sUd}, {sUd}, {W1P}
s_mul_i32 {sUc}, {sK}, {108 * 64}
s_lshl_b32 {sT1}, {sT1}, 6
s_add_u32 {sUc}, {sUc}, {sT1}
s_add_u32 {sUc}, {sUc}, {CS1}
s_branch st_j1""")
        p.label('st_w2')
        m = (sF4p, sF4c, sF5p, sF5c)
        e(f"""s_cmp_ge_u32 s2, 216
s_cselect_b32 s92, s{pWo}, s{pW2}
s_cselect_b32 s93, s{pWo + 1}, s{pW2 + 1}
s_mov_b32 s94, {640 * 1280}
s_cselect_b32 s94, s94, {1728 * 1280}
s_mov_b32 s95, 0x20000
s_mov_b32 {sK}, 216
s_cselect_b32 {sK}, {sK}, 108
s_mov_b32 {sUd}, {WO}
s_cselect_b32 {sUd}, {sUd}, {W2P}
s_cselect_b32 {sUc}, 20, 54
s_sub_u32 {sK}, s2, {sK}
s_and_b32 {sH}, {sK}, 1
s_lshr_b32 {sK}, {sK}, 1
s_mul_i32 {sT0}, {sK}, 52
s_lshr_b32 {sT0}, {sT0}, 8
s_mul_i32 {sT1}, {sT0}, 5
s_sub_u32 {sT1}, {sK}, {sT1}
s_mul_i32 {sT0}, {sT0}, 160
s_mul_i32 {m[0]}, {sT1}, 40
s_cmp_eq_u32 {sT1}, 4
s_cselect_b32 {m[0]}, 16, {m[0]}
s_cselect_b32 {m[1]}, 40, 20
s_cselect_b32 {m[2]}, 20, 8
s_cselect_b32 {m[3]}, 80, 4
s_add_u32 {sT0}, {sT0}, {m[0]}
s_lshl_b32 {m[0]}, {sK}, 5
s_cmp_eq_u32 {sUc}, 20
s_cselect_b32 {sT0}, {sT0}, {m[0]}
s_cselect_b32 {m[1]}, {m[1]}, 16
s_cselect_b32 {m[2]}, {m[2]}, 8
s_cselect_b32 {m[3]}, {m[3]}, 4
s_mul_i32 {sT0}, {sT0}, 1280
s_mul_i32 {sT1}, {sH}, 640
s_add_u32 {sT0}, {sT0}, {sT1}
s_mov_b32 {sT1}, {(1 << 32) // 40 + 1}""")
        for i in range(5):
            e(f"""v_add_u32 {t[5]}, {i * 256}, v0
v_mul_hi_u32 {t[6]}, {t[5]}, {sT1}
v_mul_u32_u24 {t[7]}, 40, {t[6]}
v_sub_u32 {t[5]}, {t[5]}, {t[7]}
v_and_b32 {t[7]}, 3, {t[6]}
v_bfe_u32 {t[8]}, {t[6]}, 2, 1
v_mad_u32_u24 {t[7]}, {t[8]}, {m[3]}, {t[7]}
v_bfe_u32 {t[8]}, {t[6]}, 3, 1
v_mad_u32_u24 {t[7]}, {t[8]}, {m[2]}, {t[7]}
v_lshrrev_b32 {t[8]}, 4, {t[6]}
v_mad_u32_u24 {t[7]}, {t[8]}, {m[1]}, {t[7]}
v_mul_u32_u24 {t[7]}, 1280, {t[7]}
v_lshl_add_u32 {t[6]}, {t[5]}, 4, {t[7]}
v_add_u32 {UAD[i]}, {sT0}, {t[6]}""")
        e(f"""v_mul_u32_u24 {vU}, 640, {t[11]}
s_mul_i32 {sT0}, {sW}, 160
s_add_u32 {sT0}, {sT0}, {LU}
v_add_u32 {vU}, {sT0}, {vU}
v_lshl_add_u32 {vU4}, {vC}, 3, {vU}
v_lshl_add_u32 {vU}, {vC}, 4, {vU}
s_lshl_b32 {sT0}, {sH}, 2
s_add_u32 {sT0}, {sT0}, {sW}
s_mul_i32 {sT0}, {sT0}, {sUc}
s_add_u32 {sT0}, {sT0}, {sK}
s_mul_i32 {sT0}, {sT0}, 5120
s_add_u32 {sUd}, {sUd}, {sT0}""")
        p.label('st_j1')
        for i in range(1, 18):
            e(f's_mov_b32 s{KBASE + i}, {i * 4096}')
        PZ = V(92, 6)
        e(f"""s_lshl_b32 {sT1}, {sJ}, 14
s_lshl_b32 {sT2}, {sG}, 11
s_add_u32 {sT1}, {sT1}, {sT2}
s_add_u32 {sKVp}, {sT1}, {KV}
v_mov_b32 {PZ[0]}, -1
v_mov_b32 {PZ[1]}, -1
v_mov_b32 {PZ[2]}, -1
v_mov_b32 {PZ[3]}, -1
v_mov_b32 {PZ[4]}, 0
v_lshrrev_b32 {t[5]}, 7, v0
v_and_b32 {t[6]}, 0x7ff, {vT16}
v_lshl_add_u32 {t[5]}, {t[5]}, 19, {t[6]}
s_lshl_b32 {sT1}, {sD1}, 8
s_add_u32 {sT1}, {sT1}, {FL}
v_mov_b32 {PZ[5]}, {ONES}""")
        e(self.st(PZ[0:4], t[5], sKVp, 0, ' sc1'))
        e(self.st(PZ[4], vL4, sT1, 0, ' sc1'))
        e(f"""s_getreg_b32 {sMode}, hwreg(HW_REG_XCC_ID, 0, 4)
s_mul_i32 {sFA}, {sEp}, 0x9e3779b1
s_xor_b32 {sFB}, {sFA}, 0xa5a5a5a5
s_add_u32 {sFA}, {sFA}, 1""")
        if self.o['stamps'] == 4:
            self.stamp('a_addr')
        e(wait(vm='x'))
        if self.o['stamps'] == 4:
            self.stamp('a_xin')
        e('s_barrier')
        self.stamp('p0_in')
        for i in range(3):
            e(f'ds_read_b64_tr_b16 {QF.q(i)[0:2]}, {vQr} offset:{i * 16 * 144}')
            e(f'ds_read_b64_tr_b16 {QF.q(i)[2:4]}, {vQr} offset:{i * 16 * 144 + 4 * 144}')
        for i in range(3):
            e(f'ds_read_b128 {XF.q(i)}, {vXr} offset:{i * 512}')
        for i, (so, o) in enumerate(((sQd, 0), (sQd, 2048), (sQd2, 0))):
            for r in range(4):
                e(f'v_cndmask_b32 {QF.q(i)[r]}, 0, {QF.q(i)[r]}, vcc')
            e(self.st(QF.q(i), vL16, so, o, ' sc1'))
        for i, so in enumerate(('0', K(8192)[0], sXd2)):
            e(self.st(XF.q(i), vXw, so, 0, ' sc1'))
        a, b, c, d = t[5], t[6], t[7], t[8]
        for r in range(4):
            e(f'v_and_b32 {XM[r]}, {sMk}, {XF[8 + r]}')
        for i, r in enumerate([XF[k] for k in range(8)] + [XM[k] for k in range(4)]):
            e(f'v_dot2_f32_bf16 {a}, {r}, {PZ[5]}, {a if i else 0}')
            e(f'v_dot2_f32_bf16 {b}, {r}, {r}, {b if i else 0}')
        for r in range(4):
            e(f'v_and_b32 {XM[r]}, {sMk}, {QF[8 + r]}')
        e(stat_reduce(a, b, c))
        e(self.st(a, vXs, sXs, 0, ' sc1'))
        for i, r in enumerate([QF[k] for k in range(8)] + [XM[k] for k in range(4)]):
            e(f'v_dot2_f32_bf16 {d}, {r}, {PZ[5]}, {d if i else 0}')
        e(f'v_mov_b32 {c}, {d}\nv_permlane32_swap_b32 {d}, {c}\nv_add_f32 {d}, {d}, {c}')
        e(self.st(d, vQc, sQc, 0, ' sc1'))
        for i in range(5):
            e(f's_add_u32 m0, {sW1K}, {LU + i * 4096}')
            e(f'buffer_load_dwordx4 {UAD[i]}, s[92:95], 0 offen{RN} lds', 'u')
        if self.o['stamps'] == 4:
            self.stamp('a_stiss')
        self.setup2(t)
        FG = V(98, 2)
        e(f"""s_add_u32 {sT0}, {sFA}, {sMode}
v_mov_b32 {FG[0]}, {sT0}
v_mov_b32 {FG[1]}, {sFB}
s_lshl_b32 {sT0}, s2, 7
s_add_u32 {sT0}, {sT0}, {PA}
s_cmp_eq_u32 {sW}, 0
s_cselect_b32 {sT0}, {sT0}, {OOB}""")
        if self.o['stamps'] == 4:
            self.stamp('a_set2')
        e(wait(vm='st'))
        e('s_barrier')
        e('s_mov_b64 exec, 1')
        e(f'buffer_store_dwordx2 {FG}, off, {WSR}, {sT0} sc1')
        e('s_mov_b64 exec, -1')
        self.stamp('p0_pub')
        self.setup3(t)
        self.stamp('p0_set')
        L, D = p.newlabel('spin'), p.newlabel('ok')
        e(f"""v_lshl_add_u32 {t[5]}, {vT32}, 3, {sG}
v_and_b32 {t[6]}, 7, {vLane}
s_lshl_b32 {sT0}, {sJ}, 3
v_add_u32 {t[6]}, {sT0}, {t[6]}
v_cmp_eq_u32 vcc, 0, {vHH}
v_cndmask_b32 {t[5]}, {t[6]}, {t[5]}, vcc
v_lshlrev_b32 {t[5]}, 7, {t[5]}
s_mov_b32 {sT0}, {PA}""")
        p.label(L)
        e(f'buffer_load_dwordx2 {FG}, {t[5]}, {WSR}, {sT0} offen sc1')
        e('s_waitcnt vmcnt(0)')
        e(f"""v_subrev_u32 {FG[0]}, {sFA}, {FG[0]}
v_xor_b32 {FG[1]}, {sFB}, {FG[1]}
v_and_or_b32 {FG[1]}, {FG[0]}, -16, {FG[1]}
v_cmp_ne_u32 vcc, 0, {FG[1]}
s_cbranch_vccz {D}""")
        e(self.spin_tail(L))
        p.label(D)
        self.stamp('p0_poll')
        CQ = V(208, 16)
        e(f's_lshl_b32 {sT1}, {sJ}, 12\ns_add_u32 {sT1}, {sT1}, {CSQ}')
        for i in range(4):
            e(self.ld(CQ.q(i), vL16, i * 1024, ' sc1', so=sT1))
        self.p1_first_loads(0)
        e(wait(lgkm='*'))
        e('s_barrier')
        UF, a, b = self.UF, self.UC, t[6]
        e('s_cmp_ge_u32 s2, 108\ns_cbranch_scc1 st_w2b')
        for i in range(5):
            e(f'ds_read_b64_tr_b16 {UF.q(i)[0:2]}, {vU} offset:{i * 4096}')
            e(f'ds_read_b64_tr_b16 {UF.q(i)[2:4]}, {vU} offset:{i * 4096 + 512}')
        for i in range(20):
            e(f'v_dot2_f32_bf16 {a}, {UF[i]}, {PZ[5]}, {a if i else 0}')
        e(f"""v_mov_b32 {b}, {a}
v_permlane32_swap_b32 {a}, {b}
v_add_f32 {a}, {a}, {b}
v_mov_b32 {b}, {a}
v_permlane16_swap_b32 {a}, {b}
v_add_f32 {a}, {a}, {b}
s_branch st_j2""")
        p.label('st_w2b')
        for k in range(5):
            ad, o = (vU, (k >> 1) * 64 + (k & 1) * 8) if k < 4 else (vU4, 128)
            e(f'ds_read_b64_tr_b16 {UF.q(k)[0:2]}, {ad} offset:{o}')
            e(f'ds_read_b64_tr_b16 {UF.q(k)[2:4]}, {ad} offset:{o + 4 * 640}')
        e(f's_mov_b32 {sUc}, {OOB}')
        e(wait(lgkm='*'))
        p.label('st_j2')
        e(f'v_lshlrev_b32 {self.UA}, 2, {vTok}\ns_add_u32 {sUd2}, {sUd}, 4096')
        e(self.unit_stores()[:self.o.get('ust0', 6)])
        e(f'v_cmp_ne_u32 vcc, {sMode}, {FG[0]}')
        e(f's_mov_b32 {sMode}, vcc_lo')
        if self.o['force'] is not None:
            e(f's_mov_b32 {sMode}, {self.o["force"]}')
        for i in range(1, 4):
            for h in range(2):
                e(f'v_pk_add_f32 {CQ[2*h:2*h+2]}, {CQ[2*h:2*h+2]}, {CQ[4*i+2*h:4*i+2*h+2]}')
        for sw in ('v_permlane32_swap_b32', 'v_permlane16_swap_b32'):
            for i in range(4):
                e(f'v_mov_b32 {CQ[4+i]}, {CQ[i]}')
            for i in range(4):
                e(f'{sw} {CQ[i]}, {CQ[4+i]}')
            for h in range(2):
                e(f'v_pk_add_f32 {CQ[2*h:2*h+2]}, {CQ[2*h:2*h+2]}, {CQ[4+2*h:6+2*h]}')
        e(f'v_lshlrev_b32 {t[5]}, 4, {vTok}')
        e(f'ds_write_b128 {t[5]}, {CQ[0:4]} offset:{L_CQ}')

    vC1a, vC1w = V(232), V(233)
    UF, UC, UA = V(234, 20), V(254), V(255)
    BB = V(100, 4)

    def unit_stores(self):
        out = []
        for i in range(5):
            so, o = (sUd, i * 1024) if i < 4 else (sUd2, 0)
            out.append(self.st(self.UF.q(i), vL16, so, o, ' sc1', 'us'))
        return out + [self.st(self.UC, self.UA, sUc, 0, ' sc1', 'us')]

    def setup2(self, t):
        e = self.e
        vLane, vTok, vQ, vHH, vT32 = t[0], t[1], t[2], t[3], t[4]
        WT = V(112, 12)
        e(f"""v_and_b32 {t[9]}, 3, {vLane}
v_lshrrev_b32 {t[10]}, 3, {vT32}
v_lshl_add_u32 {t[9]}, {t[10]}, 2, {t[9]}
v_min_u32 {t[9]}, 9, {t[9]}
v_bfe_u32 {t[10]}, {vLane}, 2, 1
v_mad_u32_u24 {t[10]}, {t[10]}, 10, {t[9]}
v_lshlrev_b32 {t[10]}, 1, {t[10]}
v_add_u32 {t[10]}, {LP}, {t[10]}
v_mul_u32_u24 {t[11]}, 320, {vHH}
v_add_u32 {t[11]}, {t[11]}, {t[10]}""")
        for i in range(8):
            e(f'ds_read_u16 {WT[i]}, {t[11]} offset:{i * 40}')
        for i in range(4):
            e(f'ds_read_u16 {WT[8 + i]}, {t[10]} offset:{(16 + i) * 40}')
        assert XA == 0 and OOB == 1 << 25
        e(f"""s_lshl_b32 {sT0}, {sG}, 4
s_lshl_b32 {sT1}, {sW}, 2
s_add_u32 {sT0}, {sT0}, {sT1}
v_and_b32 {t[5]}, 1, {vQ}
v_add_u32 {t[5]}, {sT0}, {t[5]}
v_mul_u32_u24 {t[6]}, {XT}, {t[5]}
v_lshl_add_u32 {t[6]}, {vTok}, 4, {t[6]}
v_lshl_add_u32 {vXP1}, {vHH}, 8, {t[6]}
v_lshlrev_b32 {t[7]}, 10, {t[5]}
v_lshl_add_u32 {t[7]}, {vTok}, 4, {t[7]}
v_lshl_add_u32 {t[7]}, {vHH}, 9, {t[7]}
v_add_u32 {vSP1}, {ST}, {t[7]}
s_mul_i32 {sT1}, {sTB}, 5120
s_add_u32 {sT1}, {sT1}, {OB}
s_lshl_b32 {sT3}, {sCS}, 9
s_add_u32 {sT3}, {sT3}, {sT1}
v_add_u32 {vOA}, {sT3}, {vXP1}
s_and_b32 {sT3}, {sCS}, 3
s_lshl_b32 {sT3}, {sT3}, 8
s_add_u32 {sT1}, {sT1}, {sT3}
s_lshr_b32 {sT3}, {sCS}, 2
s_lshl_b32 {sT3}, {sT3}, 3
s_add_u32 {sT1}, {sT1}, {sT3}
s_add_u32 {sT1}, {sT1}, 4096
v_add_u32 {vOL}, {sT1}, {t[6]}
v_lshl_add_u32 {vOL}, {vHH}, 25, {vOL}""")
        e(f"""s_lshl_b32 {sT0}, {sG}, 4
s_lshl_b32 {sT1}, {sTB}, 2
s_add_u32 {sT0}, {sT0}, {sT1}
s_mul_i32 {sT3}, {sW}, 13
s_min_u32 {sT1}, {sW}, 1
s_add_u32 {sT3}, {sT3}, {sT1}
s_mul_i32 {sD0}, {sW}, 5120
s_add_u32 {sD0}, {sD0}, {OB}
s_lshl_b32 {sD1}, {sT3}, 10
s_add_u32 {sD1}, {sD1}, {HB}""")
        for u in range(4):
            e(f"""s_add_u32 {sT1}, {sW}, {u + 1}
s_and_b32 {sT1}, {sT1}, 3
s_add_u32 {sT1}, {sT1}, {sT0}
s_mul_i32 {sOl[u]}, {sT1}, {XT}
s_add_u32 {sOl[u]}, {sOl[u]}, {sD0}
s_mul_i32 {sHl[u]}, {sT1}, {HT}
s_add_u32 {sHl[u]}, {sHl[u]}, {sD1}""")
        e(f"""s_mul_i32 {sW2}, {sCS}, {54 * 5120}
s_mul_i32 {sT2}, {sT3}, 5120
s_add_u32 {sW2}, {sW2}, {sT2}
s_add_u32 {sW2}, {sW2}, {W2P}
v_add_u32 {vB3}, {sW2}, {vL16}
s_mul_i32 {sWO}, {sCS}, {20 * 5120}
s_mul_i32 {sT2}, {sW}, 25600
s_add_u32 {sWO}, {sWO}, {sT2}
s_add_u32 {sWO}, {sWO}, {WO}
s_add_u32 {sT0}, {sT0}, {sW}
s_mul_i32 {sXo}, {sT0}, {XT}
s_mul_i32 {sT2}, {sCS}, 160
s_add_u32 {sOut}, {sXo}, {sT2}
s_mul_i32 {sT2}, {sCS}, 2560
s_add_u32 {sXo}, {sXo}, {sT2}
s_lshl_b32 {sSTo}, {sT0}, 10
s_lshr_b32 {sT2}, {sCS}, 2
s_lshl_b32 {sT2}, {sT2}, 8
s_add_u32 {sSTo}, {sSTo}, {sT2}
s_and_b32 {sT2}, {sCS}, 3
s_lshl_b32 {sT2}, {sT2}, 2
s_add_u32 {sSTo}, {sSTo}, {sT2}
s_add_u32 {sSTo}, {sSTo}, {ST}
s_mul_i32 {sLB}, {sW}, 10240
s_add_u32 {sLB}, {sLB}, {L_LB}
s_mul_i32 {sRB}, {sW}, 5120
s_add_u32 {sRB}, {sRB}, {L_SCR}
v_lshlrev_b32 {vX4}, 8, {vHH}
v_lshl_add_u32 {vX4}, {vTok}, 4, {vX4}
v_and_b32 {t[5]}, 1, {vQ}
v_lshl_add_u32 {vX4}, {t[5]}, 3, {vX4}
v_lshlrev_b32 {vSTs}, 9, {vHH}
v_lshl_add_u32 {vSTs}, {vTok}, 4, {vSTs}""")
        for i in range(6):
            e(f'v_lshl_or_b32 {WT[2*i]}, {WT[2*i+1]}, 16, {WT[2*i]}')
        for i in range(4):
            e(f'v_accvgpr_write_b32 {WPH[i]}, {WT[2*i]}')
        e(f'v_cmp_eq_u32 vcc, 0, {vHH}')
        for i in range(2):
            e(f'v_accvgpr_write_b32 {WPH[6+i]}, 0')
            e(f'v_accvgpr_write_b32 {WPH[10+i]}, 0')
            e(f'v_cndmask_b32 {t[5]}, 0, {WT[8+2*i]}, vcc')
            e(f'v_cndmask_b32 {t[6]}, {WT[8+2*i]}, 0, vcc')
            e(f'v_accvgpr_write_b32 {WPH[4+i]}, {t[5]}')
            e(f'v_accvgpr_write_b32 {WPH[8+i]}, {t[6]}')

    def setup3(self, t):
        e = self.e
        vLane, vTok, vQ, vHH, vT32 = t[0], t[1], t[2], t[3], t[4]
        e(f'''s_lshl_b32 {sT0}, {sG}, 13
s_add_u32 {sT0}, {sT0}, {FL}
s_lshl_b32 {sT1}, {sTB}, 7
s_lshl_b32 {sT2}, {sCS}, 4
s_add_u32 {sT1}, {sT1}, {sT2}
s_lshl_b32 {sT2}, {sW}, 2
s_add_u32 {sT1}, {sT1}, {sT2}
s_add_u32 {sF1p}, {sT0}, {sT1}
s_lshl_b32 {sT1}, {sW}, 7
s_add_u32 {sF1c}, {sT0}, {sT1}
s_lshl_b32 {sT1}, {sTB}, 9
s_lshl_b32 {sT2}, {sW}, 7
s_add_u32 {sT1}, {sT1}, {sT2}
s_lshl_b32 {sT2}, {sCS}, 2
s_add_u32 {sT1}, {sT1}, {sT2}
s_add_u32 {sT1}, {sT1}, {F3}
s_add_u32 {sF3p}, {sT0}, {sT1}
s_lshl_b32 {sT1}, {sW}, 9
s_lshl_b32 {sT2}, {sTB}, 7
s_add_u32 {sT1}, {sT1}, {sT2}
s_add_u32 {sT1}, {sT1}, {F3}
s_add_u32 {sF3c}, {sT0}, {sT1}
s_lshr_b32 {sD0}, {sW}, 1
s_lshl_b32 {sD0}, {sD0}, 7
s_and_b32 {sD1}, {sW}, 1
s_lshl_b32 {sD1}, {sD1}, 2
s_add_u32 {sD0}, {sD0}, {sD1}
s_lshl_b32 {sT1}, {sTB}, 8
s_lshl_b32 {sT2}, {sCS}, 3
s_add_u32 {sT1}, {sT1}, {sT2}
s_add_u32 {sT1}, {sT1}, {sD0}
s_add_u32 {sT1}, {sT1}, {F4}
s_add_u32 {sF4p}, {sT0}, {sT1}
s_lshl_b32 {sT1}, {sTH}, 9
s_lshl_b32 {sT2}, {sW}, 7
s_add_u32 {sT1}, {sT1}, {sT2}
s_add_u32 {sT1}, {sT1}, {F4}
s_add_u32 {sF4c}, {sT0}, {sT1}
s_lshr_b32 {sT1}, {sJ}, 2
s_lshl_b32 {sT1}, {sT1}, 8
s_and_b32 {sT2}, {sJ}, 3
s_lshl_b32 {sT2}, {sT2}, 3
s_add_u32 {sT1}, {sT1}, {sT2}
s_add_u32 {sT1}, {sT1}, {sD0}
s_add_u32 {sT1}, {sT1}, {F5}
s_add_u32 {sF5p}, {sT0}, {sT1}
s_lshl_b32 {sT1}, {sTH}, 10
s_lshl_b32 {sT2}, {sW}, 8
s_add_u32 {sT1}, {sT1}, {sT2}
s_and_b32 {sT2}, {sTB}, 1
s_lshl_b32 {sT2}, {sT2}, 7
s_add_u32 {sT1}, {sT1}, {sT2}
s_add_u32 {sT1}, {sT1}, {F5}
s_add_u32 {sF5c}, {sT0}, {sT1}''')
        e(f'''v_lshlrev_b32 {t[5]}, 4, {vT32}
v_add_u32 {t[5]}, {sW1K}, {t[5]}
v_add_u32 {t[5]}, {L_SCR}, {t[5]}
v_mul_u32_u24 {t[6]}, {PS}, {vHH}
v_add_u32 {vPW}, {t[5]}, {t[6]}
v_add_u32 {vVW}, {vPW}, {t[6]}
v_lshl_add_u32 {vBW}, {vHH}, 3, {t[5]}
v_lshrrev_b32 {t[5]}, 2, {vLane}
v_lshlrev_b32 {t[5]}, 4, {t[5]}
v_add_u32 {t[5]}, {L_SCR}, {t[5]}
v_and_b32 {t[6]}, 1, {vLane}
v_bfe_u32 {t[8]}, {vLane}, 1, 1
v_lshl_add_u32 {t[9]}, {t[6]}, 3, {t[5]}
v_cmp_eq_u32 vcc, 0, {t[8]}
v_add_u32 {t[10]}, {4 * PS}, {t[9]}
v_add_u32 {t[11]}, {5 * PS}, {t[5]}
v_cndmask_b32 {vTB0}, {t[11]}, {t[10]}, vcc
v_add_u32 {t[10]}, {6 * PS}, {t[9]}
v_add_u32 {t[11]}, {5 * PS + 8}, {t[5]}
v_cndmask_b32 {vTB1}, {t[11]}, {t[10]}, vcc
v_mul_u32_u24 {t[10]}, {PS}, {t[8]}
v_add_u32 {t[10]}, {t[10]}, {t[9]}
s_mul_i32 {sT1}, {sW}, {2 * PS}
v_add_u32 {t[10]}, {sT1}, {t[10]}
v_lshl_add_u32 {t[11]}, {t[8]}, 3, {t[5]}
v_add_u32 {t[11]}, {7 * PS}, {t[11]}
v_cmp_gt_u32 vcc, 128, v0
v_cndmask_b32 {vTA}, {t[11]}, {t[10]}, vcc''')
        e(f'''v_lshrrev_b32 {t[5]}, 4, v0
v_add_u32 {t[6]}, 8, {vHH}
v_cndmask_b32 {t[5]}, {t[6]}, {t[5]}, vcc
v_mad_u32_u24 {t[5]}, {t[5]}, 12, {vTok}
v_lshlrev_b32 {t[5]}, 4, {t[5]}
v_mov_b32 {t[9]}, {OOB}
v_and_b32 {t[6]}, 0x50, v0
v_cndmask_b32 {t[6]}, {t[6]}, 0, vcc
v_cmp_eq_u32 vcc, 0, {t[6]}
v_cndmask_b32 {t[5]}, {t[9]}, {t[5]}, vcc
v_cmp_gt_u32 vcc, 12, {vTok}
v_cndmask_b32 {vKVp}, {t[9]}, {t[5]}, vcc
s_lshl_b32 {sT1}, {sJ}, 14
s_add_u32 {sT1}, {sT1}, {KV}
v_lshlrev_b32 {t[5]}, 3, v0
v_add_u32 {t[5]}, {sT1}, {t[5]}
v_cmp_gt_u32 vcc, 240, v0
v_cndmask_b32 {vKVg}, {t[9]}, {t[5]}, vcc''')
        e(f'''v_mul_u32_u24 {t[5]}, 2731, v0
v_lshrrev_b32 {t[5]}, 16, {t[5]}
v_mul_u32_u24 {t[6]}, 24, {t[5]}
v_sub_u32 {t[6]}, v0, {t[6]}
v_lshrrev_b32 {t[8]}, 1, {t[6]}
v_and_b32 {t[9]}, 1, {t[6]}
v_and_b32 {t[10]}, 3, {t[8]}
v_lshrrev_b32 {t[8]}, 2, {t[8]}
v_lshl_add_u32 {t[10]}, {t[8]}, 3, {t[10]}
v_lshl_add_u32 {t[10]}, {t[9]}, 2, {t[10]}
v_cmp_eq_u32 vcc, 17, {t[6]}
v_cndmask_b32 {t[10]}, {t[10]}, 28, vcc
v_cmp_eq_u32 vcc, 19, {t[6]}
v_cndmask_b32 {t[10]}, {t[10]}, 24, vcc
v_lshlrev_b32 {t[8]}, 1, {t[5]}
v_subrev_u32 {t[8]}, 8, {t[8]}
v_cmp_gt_u32 vcc, 8, {t[5]}
v_cndmask_b32 {t[5]}, {t[8]}, {t[5]}, vcc
v_lshrrev_b32 {t[8]}, 1, {t[5]}
v_lshlrev_b32 {t[8]}, 9, {t[8]}
v_lshl_add_u32 {t[8]}, {t[10]}, 4, {t[8]}
v_and_b32 {t[5]}, 1, {t[5]}
v_lshl_add_u32 {t[8]}, {t[5]}, 3, {t[8]}
v_add_u32 {vIW}, {IMG}, {t[8]}
v_add_u32 {vIR}, {IMG}, {vL16}
v_mul_u32_u24 {vOne}, 0x3f80, {vHH}
v_lshl_add_u32 {vOne}, {vOne}, 16, {vOne}''')
        e(f"""v_lshlrev_b32 {t[5]}, 5, {vT32}
v_cmp_gt_u32 vcc, 28, {vT32}
v_mov_b32 {t[6]}, 1280
v_cndmask_b32 {self.vC1w}, {t[6]}, {t[5]}, vcc
v_lshlrev_b32 {t[5]}, 4, {vT32}
v_cmp_gt_u32 vcc, 20, {vT32}
v_mov_b32 {t[6]}, 512
v_cndmask_b32 {t[9]}, {t[6]}, {t[5]}, vcc""")
        U, BB = V(80, 8), self.BB
        for i in range(2):
            e(f'v_and_b32 {U[2*i]}, 0xffff, {BB[i]}')
            e(f'v_lshrrev_b32 {U[2*i+1]}, 16, {BB[i]}')
            e(f'v_lshlrev_b32 {U[4+2*i]}, 16, {BB[2+i]}')
            e(f'v_and_b32 {U[4+2*i+1]}, 0xffff0000, {BB[2+i]}')
        for i in range(2):
            e(f'ds_write2_b32 {self.vC1w}, {U[2*i]}, {U[2*i+1]} offset0:{L_C1 // 4 + 4 * i + 1} offset1:{L_C1 // 4 + 4 * i + 3}')
        e(f'ds_write_b128 {t[9]}, {U[4:8]} offset:{L_B2}')
```

```python
XA = 0x000000
OB = 0x280000
HB = 0x500000
ST = 0xBC0000
KV = 0xC00000
FL = 0xD00000
CS1 = 0xD10000
CSQ = 0xD20000
PA = 0xD40000
PB = 0xD48000
EP = 0xD50000
TS = 0xD60000
WQ = 0xE00000
WO = 0x1080000
W1P = 0x1180000
W2P = 0x1400000
WS_BYTES = 0x2000000
OOB = 0x2000000

XT = 20480
HT = 55296

F1 = 0
F3 = 512
F4 = 2560
F5 = 3584
FX = 5632

L_CQ = 0
L_C1 = 256
L_B2 = 1152
L_SCR = 2048
L_T6 = 20480
L_T4 = 40960
L_R0 = 81920
L_LB = 2048
L_END = 163840


def p3_blocks(fs):
    Q, i = fs >> 2, fs & 3
    kb = (0, 14, 27, 40)[Q]
    odd = kb + 1 if i < 2 else (kb if Q < 2 else None)
    return kb + 6 + 2 * i, kb + 2 + i, odd, i & 1


SPLIT_BLOCKS = (0, 1, 14, 15, 28, 41)


def wo_row(ks, rho):
    Qh, s = divmod(ks, 5)
    q, i = rho >> 3, rho & 7
    if s < 4:
        return 20 * (8 * Qh + 2 * s + (q >> 1)) + 8 * (q & 1) + i
    return 20 * (8 * Qh + q + 4 * (i >> 2)) + 16 + (i & 3)
```

```python
from kern2_b import *


class Gen(Start):
    P1ACC = V(40, 64)
    P1XR = V(104, 80)
    P1WF = V(184, 24)
    P1SL = V(184, 16)
    P1C = V(224, 8)

    def p1_xload(self, n, layer):
        s, T = divmod(n, 2)
        D = self.o['xdepth'][layer]
        x = self.ld(self.P1XR.q(n % (2 * D)), vXP1, T * 2 * XT + s * 512, ' sc1', tag='x', val=f'x{n}')
        if layer == 0 and n % 4 == 0:
            return self.wq_piece(n // 4 + self.o.get('wlead', 2)) + [x]
        return [x]

    def p1_first_loads(self, layer):
        if layer == 0:
            for c in range(self.o.get('wlead', 2)):
                self.e(self.wq_piece(c))
        for T in range(2):
            for i in range(2):
                self.e(self.ld(self.P1SL.q(2 * T + i), vSP1, T * 2048 + i * 256, ' sc1'))
        for n in range(self.o.get('p1n0', (12, 4))[layer]):
            self.e(self.p1_xload(n, layer))

    def stats_finish(self, a, b, rstd, nmean):
        return [f'v_mul_f32 {nmean}, 0xbacccccd, {a}',
                f'v_mul_f32 {a}, {nmean}, {nmean}',
                f'v_fmac_f32 {a}, 0xbacccccd, {b}',
                f'v_min_f32 {a}, 0, {a}',
                f'v_sub_f32 {a}, 0x3727c5ac, {a}',
                f'v_rsq_f32 {rstd}, {a}']

    def p1_pre(self, layer):
        acc = lambda T, t: self.P1ACC.q(2 * T + t, 16)
        for t in range(2):
            for rq in range(4):
                self.e(f'ds_read_b128 {acc(0, t).q(rq)}, {vHH16} offset:{L_CQ + t * 128 + rq * 32}')

    def p1_main(self, layer):
        e = self.e
        ACC, XR, WF, SL, C = self.P1ACC, self.P1XR, self.P1WF, self.P1SL, self.P1C
        D = self.o['xdepth'][layer]
        acc = lambda T, t: ACC.q(2 * T + t, 16)
        seqs = []
        for T in range(2):
            L = SL.q(T, 8)
            seqs.append([f'v_pk_add_f32 {L[0:2]}, {L[0:2]}, {L[2:4]}',
                         f'v_pk_add_f32 {L[4:6]}, {L[4:6]}, {L[6:8]}',
                         f'v_pk_add_f32 {L[0:2]}, {L[0:2]}, {L[4:6]}',
                         f'v_add_f32 {L[0]}, {L[0]}, {L[1]}',
                         f'v_mov_b32 {L[1]}, {L[0]}',
                         f'v_permlane32_swap_b32 {L[0]}, {L[1]}'] +
                        self.stats_finish(L[0], L[1], C[4 * T], C[4 * T + 2]) +
                        [f'v_mul_f32 {C[4*T+1]}, {LOG2E}, {C[4*T]}'])
        body = [x for ab in zip(*seqs) for x in ab]
        body += [f'v_add_u32 {vB0}, {L_R0}, {vL16}', f'v_add_u32 {vB1}, {L_R0 + 40960}, {vL16}', f'v_add_u32 {vB2}, {sWO}, {vL16}']
        pb_step = self.o.get('pbstep', 14)

        def wread(s):
            out = []
            if (layer == 0 and s % 2 == 0) or s == 0:
                out += [wait(vm=[f'wq{s // 2}'] + (['us'] if s == pb_step else []), lgkm=['rst', 'kw']), 's_barrier']
            for t in range(2):
                off = s * 2048 + t * 1024
                b, off = (vB0, off) if off < 40960 else (vB1, off - 40960)
                out.append(f'ds_read_b128 {WF.q((2 * s + t) % 6)}, {b} offset:{off}')
            return out
        init = []
        for T in (1, 0):
            for i in range(16):
                init.append(f'v_pk_mul_f32 {ACC[32*T+2*i:32*T+2*i+2]}, {ACC[2*i:2*i+2]}, {C[4*T+2:4*T+4]} op_sel_hi:[1,0]')
        body += init[:20] + [wread(0) + wread(1)] + init[20:]
        n0 = self.o.get('p1n0', (12, 4))[layer]
        n1 = min(2 * D, self.o.get('p1n1', (18, 8))[layer])
        e(weave(body, [self.p1_xload(n, layer) for n in range(n0, n1)]))
        self.stamp(f'p1_go{layer}')
        mm = []
        for s in range(40):
            for T in range(2):
                for t in range(2):
                    n = 2 * s + T
                    mm.append(Ins(f'{M32} {acc(T, t)}, {WF.q((2 * s + t) % 6)}, {XR.q(n % (2 * D))}, {acc(T, t)}', expect=[(XR.q(n % (2 * D)), f'x{n}')]))
        G = Gaps(mm, 6)
        for s in range(38):
            wr = wread(s + 2)
            G.put(4 * s, wr[:-1])
            G.put(4 * s + 2, wr[-1:])
        xl = [None] * n1 + [self.p1_xload(n, layer) for n in range(n1, 80)]
        last = G.paced(xl, n1, [2 * n for n in range(80)], [2 * n + 1 for n in range(80)], 2 * D, self.o.get('p1rate', (0.7, 0.6))[layer])
        if layer == 0:
            FG, vSt = V(208, 2), V(216)
            G.flow(self.unit_stores()[self.o.get('ust0', 6):], 1, self.o.get('ustend', 40))
            G.put(4 * (pb_step - 2) + 1,
                  [f'v_mov_b32 {FG[0]}, {sFA}', f'v_mov_b32 {FG[1]}, {sFB}', f's_lshl_b32 {sT0}, s2, 3', f's_add_u32 {sT0}, {sT0}, {PB}',
                   f's_cmp_eq_u32 {sW}, 0', f's_cselect_b32 {sT0}, {sT0}, {OOB}', 's_mov_b64 exec, 1',
                   f'buffer_store_dwordx2 {FG}, off, {WSR}, {sT0} sc1', 's_mov_b64 exec, -1'])
            G.put(0, f'v_add_u32 {vSt}, {L_R0}, {vW4}')
            for b in range(5):
                a = 4 * (8 * b + 4) + 1
                if b == 4:
                    G.put(a, f'v_add_u32 {vSt}, 65536, {vSt}')
                G.flow([Ins(f'ds_read_b128 {STASH.q(4 * b + i)}, {vSt} offset:{(b & 3) * 16384 + i * 1024}', 'kw') for i in range(4)], a, a + 8)
            G.put(5, self.ld(RES[0:4], vL16, 0, ' sc1', so=sXo))
            G.put(9, self.ld(RES[4:8], vL16, 1024, ' sc1', so=sXo))
            G.put(13, self.ld(RES[8:10], vX4, 2048, ' sc1', so=sXo))
            iss, chk = self.lazy_check(f'buffer_load_dwordx2 {FG}, {V(210)}, {WSR}, {sT1} offen sc1',
                                       [f'v_xor_b32 {FG[0]}, {sFA}, {FG[0]}', f'v_xor_b32 {FG[1]}, {sFB}, {FG[1]}',
                                        f'v_or_b32 {FG[0]}, {FG[0]}, {FG[1]}', f'v_cmp_ne_u32 vcc, 0, {FG[0]}'])
            ci, cc = self.o.get('pbchk', (93, 127))
            assert cc % 8 == 7
            G.put(ci, [f'v_lshrrev_b32 {V(210)}, 1, {vT16}', f's_mov_b32 {sT1}, {PB}'] + iss)
            G.put(cc, chk)
            last = max(last, cc + 1)
            C1 = V(208, 8)
            G.put(cc + 2, self.ld(C1[0:4], self.vC1a, 0, ' sc1'))
            G.put(cc + 3, self.ld(C1[4:8], self.vC1a, 2 * 108 * 64, ' sc1'))
        G.flow(self.take('p1_a', layer), 0, 32)
        for b in range(4):
            x = self.take(f'p1_c{b}', layer)
            if layer:
                G.put(32 * b + 31, 's_barrier')
            G.flow(x, 32 * b + 32, 32 * b + 64)
        tail = self.take('p1_tail', layer)
        k = min(len(tail), int((159 - last) * self.o.get('tailrate', 0.5)))
        G.flow(tail[:k], last + 1, 160)
        self.fine(G, 'p1', layer, (0, 31, 63, 95, 127))
        e(G.emit())
        self.stamp(f'p1_mm{layer}')
        return tail[k:]

    def softmax(self, P, Sc, E, X, OUT):
        a, b = X[0], X[1]
        o = [f'v_max3_f32 {a}, {P[0]}, {P[1]}, {P[2]}', f'v_max3_f32 {b}, -{P[0]}, -{P[1]}, -{P[2]}']
        for i in (3, 5, 7):
            o += [f'v_max3_f32 {a}, {a}, {P[i]}, {P[i+1]}', f'v_max3_f32 {b}, {b}, -{P[i]}, -{P[i+1]}']
        o += [f'v_max_f32 {a}, {a}, {P[9]}', f'v_max_f32 {b}, {b}, -{P[9]}',
              f'v_permlane32_swap_b32 {a}, {b}',
              f'v_max_f32 {X[2]}, {a}, {b}',
              f'v_mul_f32 {a}, -{X[2]}, {Sc[1]}',
              f'v_mul_f32 {b}, -{X[2]}, {Sc[1]}',
              f'v_permlane32_swap_b32 {a}, {b}']
        for i in range(0, 10, 2):
            o.append(f'v_pk_fma_f32 {E[i:i+2]}, {Sc}, {P[i:i+2]}, {X[0:2]} op_sel:[1,0,0] op_sel_hi:[1,1,0]')
            o.append(f'v_pk_fma_f32 {E[10+i:12+i]}, {Sc}, {P[i:i+2]}, {X[0:2]} op_sel:[1,0,1] op_sel_hi:[1,1,1] neg_lo:[1,0,0] neg_hi:[1,0,0]')
        for i in range(20):
            o.append(f'v_exp_f32 {E[i]}, {E[i]}')
        o += [f'v_pk_add_f32 {X[0:2]}, {E[0:2]}, {E[2:4]}', f'v_pk_add_f32 {X[2:4]}, {E[10:12]}, {E[12:14]}']
        for i in (4, 6, 8):
            o += [f'v_pk_add_f32 {X[0:2]}, {X[0:2]}, {E[i:i+2]}', f'v_pk_add_f32 {X[2:4]}, {X[2:4]}, {E[10+i:12+i]}']
        o += [f'v_add_f32 {a}, {X[0]}, {X[1]}', f'v_add_f32 {b}, {X[2]}, {X[3]}',
              f'v_permlane32_swap_b32 {a}, {b}',
              f'v_add_f32 {a}, {a}, {b}',
              f'v_rcp_f32 {a}, {a}',
              f'v_mov_b32 {b}, {a}',
              f'v_permlane32_swap_b32 {a}, {b}']
        for i in range(0, 20, 2):
            sel = 'op_sel_hi:[0,1]' if i < 10 else 'op_sel:[1,0] op_sel_hi:[1,1]'
            o.append(f'v_pk_mul_f32 {E[i:i+2]}, {X[0:2]}, {E[i:i+2]} {sel}')
            o.append(f'v_cvt_pk_bf16_f32 {OUT[i//2]}, {E[i]}, {E[i+1]}')
        return o


    PP = V(136, 32)
    PH = V(232, 24)

    def p1_epilogue(self, layer, left):
        e, p = self.e, self.p
        ACC, C = self.P1ACC, self.P1C
        acc = lambda T, t: ACC.q(2 * T + t, 16)
        PK = V(104, 32)
        KA, MX, QA, VA = [[PK.q(4 * T + i) for T in range(2)] for i in range(4)]
        PP, PH = self.PP, self.PH
        EE = V(168, 40)
        XX = V(208, 8)
        rs = lambda T: C[4 * T:4 * T + 2]
        body = []
        for T in range(2):
            a0, a1 = acc(T, 0), acc(T, 1)
            P = PP.q(T, 16)
            body += cvt(KA[T], a0[0:8])
            body += [f'v_mul_f32 {a1[i]}, {a1[i]}, {C[4 * T]}' for i in range(12, 16)]
            body += [f'{M32} {P}, {WPH.q(0)}, {KA[T]}, 0']
            body += cvt(MX[T], a1[8:16])
            body += [f'v_or_b32 {MX[T][2]}, {vOne}, {MX[T][2]}']
            body += [Ins(f'ds_write_b64 {vBW}, {MX[T][2:4]} offset:{5 * PS + T * 512}', 'kw')]
            body += [f'v_mul_f32 {a0[8]}, {a0[8]}, {C[4 * T]}']
            body += [f'{M32} {P}, {WPH.q(1)}, {MX[T]}, {P}']
        for T in range(2):
            a0 = acc(T, 0)
            body += [f'v_mul_f32 {a0[i]}, {a0[i]}, {C[4 * T]}' for i in range(9, 16)]
            body += cvt(VA[T], a0[8:16])
            body += [Ins(f'ds_write_b128 {vVW}, {VA[T]} offset:{4 * PS + T * 512}', 'kw')]
        if layer == 0:
            C1 = V(208, 8)
            for i in range(4):
                body += [f'v_add_f32 {C1[i]}, {C1[i]}, {C1[4+i]}', f'v_mov_b32 {C1[4+i]}, {C1[i]}']
            body += [f'v_permlane32_swap_b32 {C1[i]}, {C1[4+i]}' for i in range(4)]
            body += [f'v_add_f32 {C1[i]}, {C1[i]}, {C1[4+i]}' for i in range(4)]
            for i in range(4):
                body += [f'v_cvt_pk_bf16_f32 {C1[4+i]}, {C1[i]}, {C1[i]}', f'v_and_b32 {C1[4+i]}, 0xffff0000, {C1[4+i]}',
                         f'v_sub_f32 {C1[4+i]}, {C1[i]}, {C1[4+i]}', f'v_cvt_pk_bf16_f32 {C1[i]}, {C1[i]}, {C1[4+i]}']
            body += [f'ds_write2_b32 {self.vC1w}, {C1[2*i]}, {C1[2*i+1]} offset0:{L_C1 // 4 + 4 * i} offset1:{L_C1 // 4 + 4 * i + 2}' for i in range(2)]
        seqs = []
        for T in range(2):
            O = PH.q(T, 12)
            s = self.softmax(PP.q(T, 16), rs(T), EE.q(T, 20), XX.q(T), O)
            n = len(s)
            s.insert(n - 4, Ins(f'ds_write_b128 {vPW}, {O[4:8]} offset:{2 * PS + T * 512}', 'kw'))
            s.insert(n - 12, Ins(f'ds_write_b128 {vPW}, {O[0:4]} offset:{T * 512}', 'kw'))
            s.append(Ins(f'ds_write_b64 {vBW}, {O[8:10]} offset:{7 * PS + T * 512}', 'kw'))
            seqs.append(s)
        body += lagzip(seqs[0], seqs[1], self.o['lag'])
        for T in range(2):
            body += cvt(QA[T], acc(T, 1)[0:8])
        body = weave(body, left + self.take('kepi', layer), 0, len(body) * 3 // 4)
        e(body)
        for T in range(2):
            P = PP.q(T, 16)
            e(f'{M32} {P}, {WPH.q(0)}, {QA[T]}, 0')
            e(f'{M32} {P}, {WPH.q(2)}, {MX[T]}, {P}')
        e(wait(lgkm='kw'))
        e('s_barrier')
        self.stamp(f'kepi{layer}')
        self.take('p1_c4', layer)
        FA, FB = V(40, 32), V(72, 32)
        FB1 = V(168, 32)
        KD = V(200, 8)
        rd = []
        for ks in range(8):
            g = []
            for dst, a in ((FA, vTA), (FB, vTB0), (FB1, vTB1)):
                for jj in range(2):
                    g.append(f'ds_read_b64_tr_b16 {dst.q(ks)[2*jj:2*jj+2]}, {a} offset:{ks * 512 + jj * 256}')
            rd.append(g)
        e(rd[0])
        e(rd[1])
        for ks in range(8):
            nx = rd[ks + 2] if ks + 2 < 8 else []
            e(f'{M16} {KD.q(0)}, {FA.q(ks)}, {FB.q(ks)}, {KD.q(0) if ks else 0}')
            e(nx[:3])
            e(f'{M16} {KD.q(1)}, {FA.q(ks)}, {FB1.q(ks)}, {KD.q(1) if ks else 0}')
            e(nx[3:])
        KO = V(40, 4)
        if layer:
            e(f's_add_u32 {sKVp}, {sKVp}, 0x80000\nv_add_u32 {vKVg}, 0x80000, {vKVg}')
        e(cvt(KO, KD))
        for i in range(4):
            e(f'v_min_u32 {KO[i]}, -2, {KO[i]}')
        e(self.st(KO, vKVp, sKVp, 0, ' sc1', 'kv'))
        self.stamp(f'kvst{layer}')
        G, GS, KF = V(48, 16), V(64, 4), V(72, 12)
        seqs = []
        for T in range(2):
            O = PH.q(T, 12)
            seqs.append(self.softmax(PP.q(T, 16), rs(T), EE.q(T, 20), XX.q(T), O) +
                        [f'v_mov_b32 {O[10]}, 0', f'v_mov_b32 {O[11]}, 0'])
        body = [x for ab in zip(*seqs) for x in ab]
        body += lines(f'v_mov_b32 {vB0}, 0x3f80\nv_mov_b32 {vB1}, 0x3f800000\nv_mov_b32 {KF[10]}, 0\nv_mov_b32 {KF[11]}, 0')
        gpos = int(len(body) * self.o.get('gpos', 1.0))
        body = weave(body, self.take('qepi', layer), 0, max(1, gpos // 2))
        gl = lambda: [self.ld(G.q(i, 2), vKVg, i * 2048, ' sc1') for i in range(8)]
        e(body[:gpos])
        e(gl())
        post = self.take('gpost', layer)
        e(weave(body[gpos:], post) if gpos < len(body) else post)
        self.stamp(f'qepi{layer}')
        L, Dn = p.newlabel('kvspin'), p.newlabel('kvok')
        p.label(L)
        t = XX[0]
        e(f'v_max_u32 {t}, {G[0]}, {G[1]}')
        for h in range(2):
            e(f'v_dot2_f32_bf16 {GS[2*h]}, {G[h]}, {vB0}, 0')
            e(f'v_dot2_f32_bf16 {GS[2*h+1]}, {G[h]}, {vB1}, 0')
        for i in range(1, 8):
            e(f'v_max3_u32 {t}, {t}, {G[2*i]}, {G[2*i+1]}')
            if i == 7:
                e(f'v_cmp_eq_u32 vcc, -1, {t}')
            for h in range(2):
                e(f'v_dot2_f32_bf16 {GS[2*h]}, {G[2*i+h]}, {vB0}, {GS[2*h]}')
                e(f'v_dot2_f32_bf16 {GS[2*h+1]}, {G[2*i+h]}, {vB1}, {GS[2*h+1]}')
        e(f's_cbranch_vccz {Dn}')
        p.items.append(Pseudo('skip_begin', Dn))
        e(gl())
        e('s_waitcnt vmcnt(0)')
        e(self.spin_tail(L))
        p.items.append(Pseudo('skip_end', Dn))

    def p1_out(self, layer):
        e = self.e
        PP, PH = self.PP, self.PH
        G, GS, KF = V(48, 16), V(64, 4), V(72, 12)
        e(cvt(G[0:2], GS))
        e(f'ds_write_b64 {vIW}, {G[0:2]}', 'iw')
        self.stamp(f'gath{layer}')
        e(self.take('img', layer))
        e(wait(lgkm='iw'))
        e('s_barrier')
        e(f'ds_read_b128 {KF[0:4]}, {vIR}')
        e(f'ds_read_b128 {KF[4:8]}, {vIR} offset:1024')
        e(f'ds_read_b64 {KF[8:10]}, {vIR} offset:2048')
        for T in range(2):
            for s in range(3):
                P = PP.q(T, 16)
                e(f'{M32} {P}, {KF.q(s)}, {PH.q(T, 12).q(s)}, {P if s else 0}')
        OO = V(88, 16)
        for T in range(2):
            P = PP.q(T, 16)
            O = OO.q(T, 8)
            e(f'v_add_f32 {P[12]}, 0x358637bd, {P[12]}')
            e(f'v_rcp_f32 {P[12]}, {P[12]}')
            for i in range(0, 12, 2):
                if T == 0 and i < 6:
                    e(f'v_mul_f32 {P[i]}, {P[i]}, {P[12]}\nv_mul_f32 {P[i+1]}, {P[i+1]}, {P[12]}')
                else:
                    e(f'v_pk_mul_f32 {P[i:i+2]}, {P[i:i+2]}, {P[12:14]} op_sel_hi:[1,0]')
                e(f'v_cvt_pk_bf16_f32 {O[i//2]}, {P[i]}, {P[i+1]}')
                if i == 6:
                    e(self.st(O[0:4], vOA, K(T * 2 * XT)[0], 0, self.fresh(layer, 'o')))
            e(self.st(O[4:6], vOL, K(T * 2 * XT)[0], 0, self.fresh(layer, 'o')))
        e(self.take('o_fin', layer))
        self.p2_pre(layer)
        self.publish(sF3p, layer + 1)
        self.stamp(f'opub{layer}')

    def acc_init(self, acc, bias, tmp):
        out = []
        if bias:
            out += [f'ds_read_b128 {tmp.q(c)}, {vQ16} offset:{L_B2 + c * 64}' for c in range(5)]
        for i in range(10):
            out.append(f'v_lshlrev_b32 {acc[2*i]}, 16, {RES[i]}')
            out.append(f'v_and_b32 {acc[2*i+1]}, 0xffff0000, {RES[i]}')
        if bias:
            out += [f'v_pk_add_f32 {acc[2*i:2*i+2]}, {acc[2*i:2*i+2]}, {tmp[2*i:2*i+2]}' for i in range(10)]
        return out

    def reduce_weave(self, G, b, n, acc, R1, R2, sWr, vRd, bufstride):
        def wr(u):
            return [Ins(f'ds_write_addtid_b32 {acc(u)[i]} offset:{(u & 1) * bufstride + i * 256}', 'rw', need=[f's_mov_b32 m0, {sWr}']) for i in range(20)]

        def rd(u, dst):
            o = (u & 1) * bufstride // 256
            return [f'ds_read2st64_b32 {dst[2*i:2*i+2]}, {vRd[u]} offset0:{o + 2 * i} offset1:{o + 2 * i + 1}' for i in range(10)]
        sync = [wait(lgkm='rw'), 's_barrier']
        r1, r2, r3 = b + n, b + 2 * n, b + 3 * n
        h = (n * 3) // 5
        G.flow(wr(0), r1 + 2, r1 + h)
        G.put(r1 + h + 1, sync)
        for i, x in enumerate(rd(0, R1)):
            G.put(min(r1 + h + 2 + i, r2 + 1), x)
        G.flow(wr(1), r2 + 2, r2 + h)
        G.put(r2 + h + 1, sync)
        G.flow([f'v_add_f32 {acc(3)[i]}, {acc(3)[i]}, {R1[i]}' for i in range(20)], r2 + 3, r3 - 1)
        for i, x in enumerate(rd(1, R2)):
            G.put(min(r2 + h + 2 + i, r3 + 1), x)
        k = G.flow(wr(2), r3 + 2, r3 + h, spread=False)
        G.put(k + 2, sync)
        G.flow(rd(2, R1), k + 3, min(k + 13, r3 + n))
        return [f'v_pk_add_f32 {acc(3)[2*i:2*i+2]}, {acc(3)[2*i:2*i+2]}, {R2[2*i:2*i+2]}' for i in range(10)]

    def reduce_addr(self, vRd, base, stride):
        for u in range(3):
            self.e(f"""s_add_u32 {sT1}, {sW}, {3 - u}
s_and_b32 {sT1}, {sT1}, 3
s_mul_i32 {sT1}, {sT1}, {stride}
s_add_u32 {sT1}, {sT1}, {base}
v_add_u32 {vRd[u]}, {sT1}, {vL4}""")

    def x_finish(self, acc, recv, last, tmp):
        e = self.e
        if last:
            e(f"""v_and_b32 {tmp[0]}, 15, v0
v_mul_u32_u24 {tmp[0]}, 1280, {tmp[0]}
v_add_u32 {tmp[1]}, {tmp[0]}, {vQ16}
v_lshrrev_b32 {tmp[2]}, 1, {vQ16}
v_add_u32 {tmp[0]}, {tmp[0]}, {tmp[2]}""")
        for i in range(10):
            e(f'v_pk_add_f32 {acc[2*i:2*i+2]}, {acc[2*i:2*i+2]}, {recv[2*i:2*i+2]}')
            e(f'v_cvt_pk_bf16_f32 {RES[i]}, {acc[2*i]}, {acc[2*i+1]}')
            if i in (3, 7):
                r = RES[i - 3:i + 1]
                e(self.st(r, tmp[1], sOut, (i >> 2) * 64, '', srd_='s[12:15]') if last else self.st(r, vL16, sXo, (i >> 2) * 1024))
        if last:
            e(self.st(RES[8:10], tmp[0], sOut, 128, '', srd_='s[12:15]'))
            return
        e(self.st(RES[8:10], vX4, sXo, 2048))
        e(f'v_mov_b32 {tmp[2]}, {ONES}')
        for i in range(10):
            e(f'v_dot2_f32_bf16 {tmp[0]}, {RES[i]}, {tmp[2]}, {tmp[0] if i else 0}')
            e(f'v_dot2_f32_bf16 {tmp[1]}, {RES[i]}, {RES[i]}, {tmp[1] if i else 0}')
        e(stat_reduce(tmp[0], tmp[1], tmp[2]))
        e(self.st(tmp[0], vSTs, sSTo, 0))

    def afl(self, layer):
        return ' sc1 nt' if (layer == 0 and self.o.get('actnt', 0) and self.sc == '') else ' sc1'

    def fresh(self, layer, what):
        return ' sc1' if (layer == 0 and what in self.o.get('actsc', 'oh')) else None

    P2RD = V(220, 3)

    def p2acc(self, u):
        return V(152, 60).q((0, 1, 0, 2)[u], 20)

    def p2_pre(self, layer):
        self.reduce_addr(self.P2RD, L_SCR, 5120)
        self.e(self.acc_init(self.p2acc(3), False, None))
        for u in range(4):
            self.e(f's_add_u32 {(sT0, sT1, sT2, sT3)[u]}, {sOl[u]}, 4096')

    def p2(self, layer):
        e = self.e
        R1, R2 = V(40, 20), V(60, 20)
        of = lambda n: V(40, 64).q(n) if n < 16 else V(136, 16).q(n - 16)
        TMP = V(224, 4)
        acc = self.p2acc
        e(self.take('p2_pre', layer))
        self.poll(sF3c, 8, layer + 1)
        self.stamp(f'p2_go{layer}')
        lds = []
        for u in range(4):
            for ks in range(5):
                so, off = (sOl[u], ks * 1024) if ks < 4 else ((sT0, sT1, sT2, sT3)[u], 0)
                lds.append(self.ld(of(5 * u + ks), vL16, off, self.afl(layer), so=so, val=f'o{u}_{ks}'))
        n0 = self.o.get('p2n0', (10, 8))[layer]
        e(lds[:n0])
        mm = []
        for u in range(4):
            for ks in range(5):
                for c in range(5):
                    a = acc(u).q(c)
                    mm.append(Ins(f'{M16} {a}, {wo_reg(5 * ks + c)}, {of(5 * u + ks)}, {a if (ks or u == 3) else 0}',
                                  expect=self.x((wo_reg(5 * ks + c), f'wo{ks}_{c}'), (of(5 * u + ks), f'o{u}_{ks}'))))
        G = Gaps(mm, 2)
        last_ld = G.paced(lds, n0, [5 * n for n in range(20)], None, 20, self.o.get('p2rate', 0.3))
        x = self.take('p2_r2', layer)
        for i, y in enumerate(x):
            G.put(last_ld + 1 + i * (75 - last_ld - 1) // len(x), y)
        x = self.take('p2_r3', layer)
        for i, y in enumerate(x):
            G.put(75 + i * 25 // len(x), y)
        last = self.reduce_weave(G, 0, 25, acc, R1, R2, sRB, self.P2RD, 20480)
        self.fine(G, 'p2', layer, (0, 24, 49, 74, 99))
        e(G.emit())
        e(last)
        self.stamp(f'p2_mm{layer}')
        self.x_finish(acc(3), R1, False, TMP)
        e(self.take('p2_fin', layer))
        e(f'v_add_u32 {vB2}, {sX3}, {vL16}')
        e(f's_add_u32 {sT0}, {sHo}, {HT}\ns_add_u32 {sT1}, {sHoO}, {HT}\ns_add_u32 {sT2}, {sHoB}, {HT}')
        self.publish(sF4p, layer + 1)
        self.stamp(f'p2_pub{layer}')
        e('s_barrier')
        e(self.take('p2_end', layer))

    def p3(self, layer):
        e = self.e
        ACC = V(40, 56)
        WF = V(96, 32)
        CA, CB = V(128, 8), V(136, 8)
        OUT = V(144, 8)
        SC = V(152, 8)
        xf = lambda n: V(160, 96).q(n) if n < 24 else X1A.q(n - 24)
        acc = lambda t, T: ACC.q(2 * t + T)
        for r in (2, 3, 6, 7):
            e(f'v_mov_b32 {CA[r]}, 0\nv_mov_b32 {CB[r]}, 0')
        self.poll(sF4c, 16, layer + 1)
        self.stamp(f'p3_go{layer}')
        xl = [self.ld(xf(2 * ks + T), vB2, T * XT + ks * 1024, ' sc1', val=f'x{2 * ks + T}') for ks in range(20) for T in range(2)]
        n0 = self.o.get('p3n0', 6)
        e(xl[:n0])
        e('s_barrier')
        e(f'v_add_u32 {vB0}, {L_R0}, {vL16}\nv_add_u32 {vB1}, {L_R0 + 40960}, {vL16}')
        passes = [(0, 1, 2, 3), (4, 5), (6,)]
        wseq = [(t, ks) for ps in passes for ks in range(20) for t in ps]
        NW, AHEAD = 8, 6

        def wread(n):
            t, ks = wseq[n]
            if t < 4:
                b, off = (vB0, vB1)[t >> 1], (t & 1) * 20480
            else:
                b, off = vB0, (L_T4 - L_T6 + (t - 4) * 20480 if t < 6 else 0)
            return Ins(f'ds_read_b128 {WF.q(n % NW)}, {b} offset:{off + ks * 1024}', f'wf{n}')
        for n in range(AHEAD):
            e(wread(n))
        e(f'v_and_b32 {vFlag}, 0xf0, {vL16}\nv_lshrrev_b32 {vFlag}, 1, {vFlag}')
        corr = {12 + i: t for i, t in enumerate((0, 1, 2, 3, 4, 5, 6))}
        mm, pos, cpos = [], [], {}
        for n, (t, ks) in enumerate(wseq):
            pos.append(len(mm))
            for T in range(2):
                mm.append(Ins(f'{M16} {acc(t, T)}, {WF.q(n % NW)}, {xf(2 * ks + T)}, {acc(t, T) if (ks or t >= 4) else 0}',
                              expect=[(xf(2 * ks + T), f'x{2 * ks + T}')]))
            if t == 3 and ks in corr:
                ct = corr[ks]
                cpos[ct] = len(mm)
                for T in range(2):
                    mm.append(Ins(f'{M16} {acc(ct, T)}, {CA.q(ct & 1)}, {CB.q(T)}, {acc(ct, T) if ct < 4 else 0}',
                                  expect=[(CA.q(ct & 1)[0:2], f'ca{ct}'), (CB.q(T)[0:2], 'cb')]))
        G = Gaps(mm, 2)
        N = len(mm)
        pB, pC = pos[80], pos[120]
        for n in range(len(wseq)):
            if n % 2 == 0:
                G.before(pos[n], wait(lgkm=f'wf{n + 1}'))
            if n + AHEAD == 80:
                G.put(pos[n], [wait(vm='w1'), 's_barrier', f'v_add_u32 {vB0}, {L_T6}, {vL16}'])
            if n + AHEAD < len(wseq):
                G.put(pos[n], wread(n + AHEAD))
        sl = [self.ld(SC.q(T), vL16, T * 1024, ' sc1', so=sST3) for T in range(2)]
        ks_ = self.o.get('p3st', 10)
        xl[ks_] = sl + [xl[ks_]]
        last_ld = G.paced(xl, n0, [pos[4 * (n // 2)] + (n & 1) for n in range(40)], None, 40, self.o.get('p3rate', 0.3))
        for ct, cp in cpos.items():
            G.put(cp - 7, Ins(f'ds_read_b64 {CA.q(ct & 1)[0:2]}, {vFlag} offset:{L_C1 + ct * 128}', val=f'ca{ct}'))
        st = []
        for T in range(2):
            L, B, t = SC.q(T), CB.q(T), OUT.q(T)
            st.append([f'v_add_f32 {L[0]}, {L[0]}, {L[1]}',
                       f'v_add_f32 {L[2]}, {L[2]}, {L[3]}',
                       f'v_add_f32 {L[2]}, {L[2]}, {L[0]}',
                       f'v_mov_b32 {L[3]}, {L[2]}',
                       f'v_permlane16_swap_b32 {L[2]}, {L[3]}',
                       f'v_add_f32 {L[2]}, {L[2]}, {L[3]}',
                       f'v_mov_b32 {L[3]}, {L[2]}',
                       f'v_permlane32_swap_b32 {L[2]}, {L[3]}'] + self.stats_finish(L[2], L[3], L[0], L[1]) +
                      [f'v_mul_f32 {L[2]}, {L[2]}, {L[0]}',
                       f'v_cvt_pk_bf16_f32 {t[0]}, {L[2]}, {L[1]}',
                       f'v_and_b32 {t[1]}, 0xffff0000, {t[0]}',
                       f'v_lshlrev_b32 {t[0]}, 16, {t[0]}',
                       f'v_cndmask_b32 {t[1]}, 0, {t[1]}, s[92:93]',
                       f'v_cndmask_b32 {t[0]}, 0, {t[0]}, s[92:93]',
                       f'v_sub_f32 {t[1]}, {L[1]}, {t[1]}',
                       f'v_sub_f32 {t[0]}, {L[2]}, {t[0]}',
                       f'v_cndmask_b32 {t[1]}, 0, {t[1]}, s[94:95]',
                       f'v_cndmask_b32 {t[0]}, 0, {t[0]}, s[94:95]',
                       Ins(f'v_cvt_pk_bf16_f32 {B[0]}, {t[1]}, {t[1]}', val='cb'),
                       Ins(f'v_cvt_pk_bf16_f32 {B[1]}, {t[0]}, 0', val='cb')])
        G.put(0, ['s_mov_b32 s92, 0xffff0000', 's_mov_b32 s93, 0', 's_mov_b32 s94, -1', 's_mov_b32 s95, 0'])
        G.flow([x for ab in zip(*st) for x in ab], 4 * ks_ - 4, cpos[0] - 2)
        G.flow(self.take('p3_A', layer), last_ld + 1, pos[73])

        def epi(tiles):
            out = []
            for T in range(2):
                sc = SC.q(T)
                for i, t in enumerate(tiles):
                    a = acc(t, T)
                    if len(tiles) == 1:
                        for h in (0, 2):
                            out.append(f'v_pk_mul_f32 {a[h:h+2]}, {a[h:h+2]}, {sc[0:2]} op_sel_hi:[1,0]')
                    else:
                        for r in range(4):
                            out.append(f'v_mul_f32 {a[r]}, {a[r]}, {sc[0]}')
                    for r in range(4):
                        out.append(f'v_mul_f32 {a[r]}, {a[r]}, abs({a[r]})')
                    for h in (0, 2):
                        out.append(f'v_cvt_pk_bf16_f32 {OUT.q(T)[2*i + h//2]}, {a[h]}, {a[h+1]}')
                    for h in (0, 2):
                        out.append(f'v_pk_max_i16 {OUT.q(T)[2*i + h//2]}, {OUT.q(T)[2*i + h//2]}, 0')
                if tiles[0] < 4:
                    out.append(self.st(OUT.q(T), vL16, (sHo, sT0)[T], (tiles[0] // 2) * 1024, self.fresh(layer, 'h'), tag='st0'))
                elif tiles[0] == 4:
                    out.append(self.st(OUT.q(T), vL16, (sHoB, sT2)[T], 0, self.fresh(layer, 'h')))
                else:
                    out.append(self.st(OUT.q(T)[0:2], vL16, (sHoO, sT1)[T], 0, self.fresh(layer, 'h')))
            return out
        G.put(pB + 3, 's_barrier')
        for slot, a, b in (('p3_B', pB + 4, pC), ('p3_C', pC, N)):
            x = self.take(slot, layer)
            for i, y in enumerate(x):
                G.put((a + i * (b - a) // len(x)) | 1, y)
        G.flow(epi((0, 1)) + epi((2, 3)), pB + 1, pC + 2)
        G.put(N - self.o.get('p3pubA', (1, 18))[layer], self.publish_ins(sF5p, 2 * layer + 1, 'st0'))
        G.flow(epi((4, 5)), pC + 3, N)
        self.fine(G, 'p3', layer, (0, 40, 80, 120, pB, pB + 40, pC))
        e(G.emit())
        self.stamp(f'p3_mm{layer}')
        e(epi((6,)))
        e('s_barrier')
        e(self.take('p3_end', layer))

    def p4(self, layer):
        e = self.e
        ACC, HF, WF, R1 = V(40, 80), V(120, 64), V(184, 40), V(224, 20)
        HA = V(244, 4)
        vLB, vRd, vLA, vLA2 = V(248), V(249, 3), V(252), V(253)
        acc = lambda u: ACC.q(u, 20)
        for u in range(4):
            e(f'v_add_u32 {HA[u]}, {sHl[u]}, {vL16}')
        e(f'v_add_u32 {vLA}, {L_R0}, {vW4}\nv_add_u32 {vLA2}, {L_R0 + 65536}, {vW4}\nv_add_u32 {vLB}, {sLB}, {vL16}')
        self.poll(sF5c, 8, 2 * layer + 1)
        self.publish(sF5p, 2 * layer + 2)
        self.stamp(f'p4_go{layer}')
        km = (10, 11, 12, 13, 8, 9, 6, 7) if layer == 0 else (10, 11, 12, 13, 6, 7, 8, 9)
        tl = (2, 3, 4, 5, 1, 0)
        hseq = [(u, s) for s in km for u in range(4)] + [(u, s) for u in range(4) for s in tl]
        NH = 16

        def hload(n):
            u, s = hseq[n]
            return self.ld(HF.q(n % NH), HA[u], s * 1024, self.afl(layer), so=sDum if s == 0 else None, val=f'h{n}')
        hl = [hload(n) for n in range(56)]
        n0 = self.o.get('p4n0', (10, 8))[layer]

        def wop(s, c):
            if s == 10 and layer == 0:
                return R1.q(c)
            return self.w2reg(s, c, layer) or WF.q((s % 2) * 5 + c)

        def la(i):
            return f'{vLA if i < 16 else vLA2}', ((i >> 2) & 3) * 16384 + (i & 3) * 1024

        def wread(s, c):
            if layer == 0 and s < 10:
                b, off, tag = vLB, (s - 8) * 5120 + c * 1024, 'w2b'
            else:
                i = (s - (10 if layer == 0 else 6)) * 5 + c
                (b, off), tag = la(i), f'w2a{i >> 2}'
            return [wait(vm=tag), Ins(f'ds_read_b128 {wop(s, c)}, {b} offset:{off}', val=f'w2_{s}_{c}')]
        e(hl[:4])
        if layer == 0:
            e([wread(10, c) for c in range(5)])
        self.reduce_addr(vRd, L_LB, 10240)
        e(weave(self.acc_init(acc(3), True, WF[0:20]), hl[4:n0]))
        e(self.take('p4_pre', layer))
        mm = []
        for n, (u, s) in enumerate(hseq):
            for c in range(5):
                a = acc(u).q(c)
                mm.append(Ins(f'{M16} {a}, {wop(s, c)}, {HF.q(n % NH)}, {a if (s != 10 or u == 3) else 0}',
                              expect=self.x((wop(s, c), f'w2_{s}_{c}'), (HF.q(n % NH), f'h{n}'))))
        G = Gaps(mm, 2)
        iss, chk = self.lazy_check(f'buffer_load_dword {vB1}, {vB0}, {WSR}, {sF5c} offen sc1', [f'v_cmp_gt_u32 vcc, {2 * layer + 2}, {vB1}'])
        k = 32 - self.o.get('p4chk', 10)
        hl[k] = iss + [hl[k]]
        hl[32] = chk + [hl[32]]
        G.paced(hl, n0, [5 * n for n in range(56)], [5 * n + 4 for n in range(56)], NH, self.o.get('p4rate', 0.25))
        if layer == 0:
            for k in range(4):
                for c in range(5):
                    b, off = la(5 * k + c)
                    G.put(20 * k + 3 * c, Ins(f'ds_write_b128 {b}, {STASH.q(5 * k + c)} offset:{off}', 'rst'))
                    G.put(20 * k + 3 * c + 1, wread(km[k + 1], c))
            G.flow([wread(9, c) for c in range(5)], 83, 95)
            G.flow([Ins(f'v_accvgpr_write_b32 {STASH[60 + i]}, {R1[i]}', val=f'w2_10_{i // 4}') for i in range(20)], 100, 150)
        else:
            for k in range(4, 8):
                G.flow([wread(km[k], c) for c in range(5)], 20 * k - 17, 20 * k - 5)
        a, b = self.o.get('p4ends', ((45, 110), (45, 110)))[layer]
        G.flow(self.take('p4_A', layer), 0, a)
        G.flow(self.take('p4_B', layer), a, b)
        last = self.reduce_weave(G, 160, 30, acc, R1, WF[0:20], sLB, vRd, 5120)
        self.fine(G, 'p4', layer, (0, 40, 80, 120, 160, 190, 220, 250, 279))
        e(G.emit())
        e(last)
        self.stamp(f'p4_mm{layer}')
        self.x_finish(acc(3), R1, layer == 1, V(252, 3))
        if layer == 0:
            self.p1_pre(1)
            self.publish(sF1p, 1)
            self.stamp(f'p4_pub{layer}')

    def body(self):
        p = self.p
        stop = self.o['stop']
        for layer in range(2):
            if layer:
                self.poll(sF1c, 32, 1)
                self.stamp('p1_poll')
                self.p1_first_loads(1)
                left = self.p1_main(layer)
                self.p1_epilogue(layer, left)
            done = False
            for name, f in (('p1', self.p1_out), ('p2', self.p2), ('p3', self.p3), ('p4', self.p4)):
                p.comment(f'---- layer {layer} {name}')
                f(layer)
                if stop == (layer, name):
                    done = True
                    break
            if done:
                break
        self.stamp('end')
        self.stamp('RT1')
        self.stamp_flush()
        self.e(f"""s_add_u32 {sEp}, {sEp}, 1
v_mov_b32 {vFlag}, {sEp}
s_or_b32 {sT1}, s2, {sW}
s_mov_b32 {sT0}, {EP}
s_cselect_b32 {sT0}, {OOB}, {sT0}
s_mov_b64 exec, 1""")
        self.e(f'buffer_store_dword {vFlag}, off, {WSR}, {sT0} sc1')
        self.e('s_endpgm')
        self.e(self.ool)
        self.ool = []

    def build(self):
        self.used = set()
        self.slots = []
        self.p = Prog('h')
        self.startup()
        self.p1_pre(0)
        left = self.p1_main(0)
        self.p1_epilogue(0, left)
        self.e(f's_cmp_lg_u32 {sMode}, 0\ns_cbranch_scc1 slow_body')
        head = self.p.finalize()
        vals, stats, state = self.p.vals, dict(self.p.stats), self.p.state
        used, slots = set(self.used), list(self.slots)
        ns, names = self.nstamp, list(self.stamp_names)
        out = head
        for pre, sc in (('f', ''), ('s', ' sc1')):
            self.p = Prog(pre)
            self.sc = sc
            self.nstamp, self.stamp_names = ns, list(names)
            self.used, self.slots = set(used), list(slots)
            if pre == 's':
                self.p.label('slow_body')
            self.body()
            out += self.p.finalize(vals, state)
            if pre == 'f':
                for k in stats:
                    stats[k] += self.p.stats[k]
        out += 'k_done:\n s_endpgm\n'
        if self.o['stop']:
            out += '.fill 16384, 4, 0xbf810000\n'
        elif not self.o.get('now'):
            for layer in range(2):
                for u, n in UNITS[layer].items():
                    for i in range(n):
                        assert (u, i, layer) in self.used, (u, i, layer)
        print('kernel:', stats, file=sys.stderr)
        return out


NAME = 'interleave_layers__linear_kernel_hedgehog__dense_activation_squared_relu__prompt_kernel'


def build_file(path, **opt):
    g = Gen(**opt)
    code = g.build()
    hdr = '; @launch grid=(256,1,1) block=(256,1,1) lds=163840\n'
    if opt.get('stamps'):
        hdr += '; stamps: ' + ' '.join(g.stamp_names) + '\n'
    open(path, 'w').write(hdr + '.amdgcn_target "amdgcn-amd-amdhsa--gfx950"\n' + kernel_header(NAME) + code +
                          kernel_footer(NAME, vgpr=512, agpr_offset=256, sgpr=102))


if __name__ == '__main__':
    opt = {}
    for a in sys.argv[2:]:
        k, v = a.split('=', 1)
        opt[k] = eval(v)
    build_file(sys.argv[1], **opt)
```

```python
import sys
from asmlib import *
from layout import *
from prepass import stat_reduce, wq_colbyte_tables, ONES

V = lambda b, n=1: R('v', b, n)
A = lambda b, n=1: R('a', b, n)
S = lambda b, n=1: R('s', b, n)
WSR = 's[8:11]'
M16 = 'v_mfma_f32_16x16x32_bf16'
M32 = 'v_mfma_f32_32x32x16_bf16'
PS = 4224
IMG = L_SCR + 8 * PS
LOG2E = '0x3fb8aa3b'
SPIN_LIMIT = 1 << 19

sEp, sMode = S(3), S(87)
sG, sJ, sW, sTB, sCS, sTH, sFS = (S(i) for i in range(20, 27))
sW1K, sW4K, sSpin, sT0, sT1, sT2, sT3 = (S(i) for i in range(27, 34))
sWQ, sW1, sW1O, sW2, sDum, sXo, sSTo, sHo, sHoO, sKVp = (S(i) for i in range(34, 44))
sF1p, sF1c, sF3p, sF3c, sF4p, sF4c, sF5p, sF5c = (S(i) for i in range(44, 52))
sOl = S(52, 4)
sHl = S(56, 4)
sX3, sST3, sWO, sOut = (S(i) for i in range(60, 64))
KBASE = 64
sW1B = S(64)
sLA, sLB, sHoB, sD0, sD1 = (S(i) for i in range(82, 87))
sTSa = S(88, 2)
sTSb = S(90, 2)
sUd, sUc, sUd2, sRB = S(4), S(5), S(6), S(7)
sFA, sFB = S(100), S(101)


def K(off):
    i, o = divmod(off, 4096)
    assert i <= 17
    return ('0' if i == 0 else f's{KBASE + i}'), o


vL16, vT16, vW4, vXP1, vSP1, vOA, vOL, vX4, vSTs, vHH16, vQ16 = (V(i) for i in range(1, 12))
vPW, vVW, vBW, vTA, vTB0, vTB1, vKVp, vKVg, vIW, vIR, vL4 = (V(i) for i in range(12, 23))
vOne, vTS, vB0, vB1, vFlag = (V(i) for i in range(23, 28))
RES = V(28, 10)
vB2, vB3 = V(38), V(39)
W2K = A(0, 100)
X1A = A(100, 64)
WPH = A(164, 12)
STASH = A(176, 80)


def wo_reg(i):
    return X1A.q(i) if i < 16 else (V(104, 32).q(i - 16) if i < 24 else V(216, 4))


def lagzip(a, b, lag):
    out = list(a[:lag])
    a = a[lag:]
    for i in range(max(len(a), len(b))):
        out += b[i:i + 1] + a[i:i + 1]
    return out


def cvt(d, s):
    return [f'v_cvt_pk_bf16_f32 {d[i]}, {s[2*i]}, {s[2*i+1]}' for i in range(d.n)]


def lines(t):
    return [x for x in t.split('\n') if x.strip()]


UNITS = (dict(WO=25, W1A=20, W1E=9, W1L=6, W2K=25, W2X=15, W2A=20, W2B=10), dict(WO=25, W1A=20, W1L=6, W2X=5, W2A=20))
FIRST_SLOT = dict(WO='p1_a', W1E='p1_a', W1L='p2_end', W2K='p1_a', W2X='p3_end', W2A='p3_B', W2B='p3_end')
LAST_SLOT = (dict(WO='p2_pre', W1A='p2_end', W1E='p3_A', W1L='p3_A', W2K='p4_B', W2X='p4_B', W2A='p3_end', W2B='p4_A'),
             dict(WO='p2_pre', W1A='p2_end', W1L='p3_A', W2X='p4_B', W2A='p4_A'))
DEFAULT_SCHED = ({
    'p1_tail': [('WO', 0, 16)],
    'kepi': [('W1A', 0, 8)],
    'qepi': [('WO', 16, 25)],
    'img': [('W1A', 8, 14)],
    'p2_r2': [('W1A', 14, 20)],
    'p3_A': [('W1L', 0, 6), ('W1E', 0, 9)],
    'p3_B': [('W2A', 0, 20)],
    'p3_C': [('W2K', 0, 10)],
    'p4_A': [('W2B', 0, 10), ('W2X', 0, 10)],
    'p4_B': [('W2K', 10, 25), ('W2X', 10, 15)],
}, {
    'p1_tail': [('WO', 0, 16)],
    'kepi': [('W1A', 0, 8)],
    'qepi': [('WO', 16, 25)],
    'img': [('W1A', 8, 14)],
    'p2_r2': [('W1A', 14, 20)],
    'p3_A': [('W1L', 0, 6)],
    'p3_B': [('W2A', 0, 20)],
    'p4_A': [('W2X', 0, 5)],
})


class Base:
    def __init__(self, **opt):
        self.o = dict(stamps=0, stop=None, xdepth=(10, 8), sched=None, lag=14, force=None, nt=())
        self.o.update(opt)
        self.nstamp = 0
        self.stamp_names = []
        self.sc = ''
        sc = self.o['sched'] or DEFAULT_SCHED
        self.sched = sc if isinstance(sc, (list, tuple)) else (sc, sc)
        self.ool = []

    def e(self, x, tag=None):
        self.p.e(x, tag)

    def srd(self, s, lo, nbytes):
        if lo != s:
            self.e(f's_mov_b32 s{s}, s{lo}\ns_mov_b32 s{s+1}, s{lo+1}')
        self.e(f's_mov_b32 s{s+2}, {nbytes}\ns_mov_b32 s{s+3}, 0x20000')

    def stamp_ins(self, name):
        ec = self.o.get('echo')
        if ec:
            return [f's_memrealtime {(sTSa, sTSb)[ec.index(name)]}', 's_waitcnt lgkmcnt(0)'] if name in ec[:2] else []
        if not self.o['stamps']:
            return []
        i = self.nstamp
        assert i < 64
        cur, prev = (sTSa, sTSb) if i & 1 == 0 else (sTSb, sTSa)
        out = []
        if i:
            out.append(f'v_writelane_b32 {vTS}, {prev[0]}, {i - 1}')
        out.append(f's_mem{"real" if name.startswith("RT") else ""}time {cur}')
        self.stamp_names.append(name)
        self.nstamp += 1
        return out

    def stamp(self, name):
        self.e(self.stamp_ins(name))

    def fine(self, G, ph, layer, idx):
        if self.o['stamps'] == 2 + (1 - layer):
            for i in idx:
                G.put(i, self.stamp_ins(f'{ph}@{i}'))
        if self.o.get('verbose') and self.sc == '':
            print(ph, layer, 'overflow', round(G.overflow(), 1), file=sys.stderr)

    def stamp_flush(self):
        ec = self.o.get('echo')
        if ec:
            L = self.p.newlabel('echo')
            self.e(f's_sub_u32 {sT0}, {sTSb[0]}, {sTSa[0]}\ns_mul_i32 {sT0}, {sT0}, {ec[2]}\ns_min_u32 {sT0}, {sT0}, 100000')
            self.e(f's_memrealtime {sTSa}\ns_waitcnt lgkmcnt(0)')
            self.p.label(L)
            self.e(f's_memrealtime {sTSb}\ns_waitcnt lgkmcnt(0)\ns_sub_u32 {sT1}, {sTSb[0]}, {sTSa[0]}\ns_cmp_lt_u32 {sT1}, {sT0}\ns_cbranch_scc1 {L}')
            return
        if not self.o['stamps']:
            return
        i = self.nstamp
        prev = sTSb if i & 1 == 0 else sTSa
        self.e(f'v_writelane_b32 {vTS}, {prev[0]}, {i - 1}')
        self.e(f'''s_lshl_b32 {sT0}, s2, 10
s_lshl_b32 {sT1}, {sW}, 8
s_add_u32 {sT0}, {sT0}, {sT1}
s_add_u32 {sT0}, {sT0}, {TS}''')
        self.e(f'buffer_store_dword {vTS}, {vL4}, {WSR}, {sT0} offen')

    def ld(self, dst, vaddr, off, fl='', so=None, tag=None, val=None):
        op = {1: 'dword', 2: 'dwordx2', 4: 'dwordx4'}[dst.n]
        if so is None:
            so, o = K(off)
        else:
            o = off
        assert 0 <= o < 4096
        return Ins(f'buffer_load_{op} {dst}, {vaddr}, {WSR}, {so} offen offset:{o}{fl}', tag, val)

    def st(self, src, vaddr, so, off=0, fl=None, tag='st', srd_=WSR):
        op = {1: 'dword', 2: 'dwordx2', 4: 'dwordx4'}[src.n]
        if fl is None:
            fl = self.sc
        assert 0 <= off < 4096
        return Ins(f'buffer_store_{op} {src}, {vaddr}, {srd_}, {so} offen offset:{off}{fl}', tag)

    def dma(self, smbase, lds_off, vaddr, sg, g_off, n, tag, fl=None):
        if fl is None:
            fl = self.wfl(tag)
        need = [f's_add_u32 m0, {smbase}, {lds_off}', f's_add_u32 {sD0}, {sg}, {g_off}']
        return [Ins(f'buffer_load_dwordx4 {vaddr}, {WSR}, {sD0} offen offset:{i * 1024}{fl} lds', tag, need=need) for i in range(n)]

    def wfl(self, tag):
        return ' sc1 nt' if tag[:2] in self.o.get('nt', ()) else ' sc1'

    def spin_tail(self, L):
        return lines(f's_add_u32 {sSpin}, {sSpin}, 1\ns_cmp_lt_u32 {sSpin}, {SPIN_LIMIT}\ns_cbranch_scc1 {L}')

    def poll(self, so, n, val):
        p = self.p
        L, D = p.newlabel('spin'), p.newlabel('ok')
        self.e(f'v_and_b32 {vB0}, {(n - 1) * 4}, {vL4}')
        p.label(L)
        self.e(f'buffer_load_dword {vB1}, {vB0}, {WSR}, {so} offen sc1')
        self.e('s_waitcnt vmcnt(0)')
        self.e(f'v_cmp_gt_u32 vcc, {val}, {vB1}')
        self.e(f's_cbranch_vccz {D}')
        self.e(self.spin_tail(L))
        p.label(D)

    def lazy_check(self, load, test):
        p = self.p
        L, B = p.newlabel('retry'), p.newlabel('back')
        self.ool += [Pseudo('label', L), Pseudo('drained'), Ins(load), Ins('s_waitcnt vmcnt(0)')] + [Ins(t) for t in test]
        self.ool += [Ins(f's_cbranch_vccz {B}')] + [Ins(t) for t in self.spin_tail(L)] + [Ins(f's_branch {B}')]
        return [load], list(test) + [f's_cbranch_vccnz {L}', Pseudo('label', B)]

    def publish_ins(self, so, val, tag='st'):
        return [f'v_mov_b32 {vFlag}, {val}', wait(vm=tag), 's_mov_b64 exec, 1',
                Ins(f'buffer_store_dword {vFlag}, off, {WSR}, {so}{self.sc}', 'flag'), 's_mov_b64 exec, -1']

    def publish(self, so, val):
        self.e(self.publish_ins(so, val))

    def w2reg(self, ls, c, layer):
        if ls < 5:
            return W2K.q(ls * 5 + c)
        if ls == 5 or (ls < 8 and layer == 0):
            return X1A.q((ls - 5) * 5 + c)
        if ls >= 11 or (ls == 10 and layer == 1):
            return STASH.q(((ls - 11) % 4) * 5 + c)
        return None

    def unit(self, name, layer):
        flat = lambda L: [x for b in L for x in b]
        if name == 'WO':
            return [self.ld(wo_reg(i), vB2, i * 1024, self.wfl('wo'), tag='wo', val=f'wo{i // 5}_{i % 5}') for i in range(25)]
        if name == 'W1A':
            return flat(self.dma(sW4K, L_R0 + b * 16384, vW4, sW1, b * 16384, 4, 'w1') for b in range(5))
        if name == 'W1E':
            return flat([self.dma(sW4K, L_T4 + 8192, vW4, sW1B, 8192, 4, 'w1'), self.dma(sW4K, L_T4 + 24576, vW4, sW1B, 24576, 4, 'w1'),
                         self.dma(sW1K, L_T4 + 4096, vT16, sW1B, 4096, 1, 'w1')])
        if name == 'W1L':
            return flat([self.dma(sW1K, L_T4, vT16, sW1B, 0, 1, 'w1'), self.dma(sW4K, L_T6, vW4, sW1O, 0, 4, 'w1'),
                         self.dma(sW1K, L_T6 + 16384, vT16, sW1O, 16384, 1, 'w1')])
        if name in ('W2K', 'W2X'):
            out = []
            for ls in ((2, 3, 4, 1, 0) if name == 'W2K' else ((6, 7, 5) if layer == 0 else (5,))):
                for c in range(5):
                    kw = dict(tag='w2', val=f'w2_{ls}_{c}')
                    if ls == 0:
                        x = self.ld(self.w2reg(ls, c, layer), vB3, c * 1024 if c < 4 else 0, self.wfl('w2'), so=sDum if c < 4 else sD1, **kw)
                        if c == 4:
                            x.need = [f's_add_u32 {sD1}, {sDum}, 4096']
                        out.append(x)
                    else:
                        out.append(self.ld(self.w2reg(ls, c, layer), vB3, ls * 5120 + c * 1024, self.wfl('w2'), **kw))
            return out
        if name == 'W2A':
            first = 10 if layer == 0 else 6
            return flat(self.dma(sW4K, L_R0 + b * 16384, vL16, sW2, first * 5120 + b * 4096, 4, f'w2a{b}') for b in range(5))
        if name == 'W2B':
            return flat(self.dma(sLB, b * 4096, vL16, sW2, 8 * 5120 + b * 4096, 4 if b < 2 else 2, 'w2b') for b in range(3))
        raise ValueError(name)

    def wq_piece(self, c):
        if self.o.get('now') or c >= 20:
            return []
        return self.dma(sW1K, L_R0 + c * 4096, vT16, sWQ, c * 4096, 1, f'wq{c}')

    def take(self, slot, layer):
        out = []
        self.slots.append((slot, layer))
        if self.o.get('now'):
            return out
        for u, a, b in self.sched[layer].get(slot, []):
            for i, x in enumerate(self.unit(u, layer)[a:b]):
                first = FIRST_SLOT[u] if u != 'W1A' else f'p1_c{(a + i) // 4}'
                if u == 'WO' and a + i >= 16:
                    first = 'p1_c4'
                if layer == 0 and first in ('p1_c0', 'p1_c1', 'p1_c2', 'p1_c3', 'p1_a'):
                    first = 'p1_tail'
                assert (first, layer) in self.slots, (u, a + i, slot, first)
                assert (LAST_SLOT[layer][u], layer) not in self.slots[:-1], (u, slot)
                assert (u, a + i, layer) not in self.used
                self.used.add((u, a + i, layer))
                out.append(x)
        return out

    def x(self, *pairs):
        return None if self.o.get('now') else list(pairs)
```
